```python
import torch

def _softmax(x, axis=-1):
    return torch.softmax(x, dim=axis)
def _gelu(x):
    return torch.nn.functional.gelu(x, approximate="tanh")
def _silu(x):
    return torch.nn.functional.silu(x)
def _sigmoid(x):
    return torch.sigmoid(x)
def _layernorm(x, axis=-1, eps=1e-5):
    m = x.mean(dim=axis, keepdim=True)
    v = x.var(dim=axis, keepdim=True, unbiased=False)
    return (x - m) / torch.sqrt(v + eps)
def _scatter_add(tgt, idx, src, axis=0):
    return tgt.clone().index_add_(axis, idx, src)
def _segment_sum(src, seg, n):
    out = torch.zeros((n,) + src.shape[1:], dtype=src.dtype)
    return out.index_add_(0, seg, src)
def _pad(x, pw):
    flat = tuple(v for pair in reversed(pw) for v in pair)
    return torch.nn.functional.pad(x, flat)

kernel_name = 'gated_mix__softmax_full_mha__grouped_kv_mqa__prompt'

def setup_inputs():

    _w = (lambda a: (lambda t: t.to(torch.bfloat16) if t.is_floating_point() else t)(torch.as_tensor(a)))
    def _A_setup():
        B, S, D = 1, 2048, 512
        return {
            "x": _w((lambda *s: torch.randn(*s, dtype=torch.bfloat16) * 0.05)(B, S, D)),
            "wqkv": _w((lambda *s: torch.randn(*s, dtype=torch.bfloat16) * 3.2)(D, 3 * D)),
            "wo": _w((lambda *s: torch.randn(*s, dtype=torch.bfloat16) * 1.6)(D, D)),
        }
    _A_in = _A_setup()

    def _B_setup():
        B, S, D, H = 1, 2048, 512, 32
        Dh = D // H
        return {
            "x": _w((lambda *s: torch.randn(*s, dtype=torch.bfloat16) * 0.05)(B, S, D)),
            "wq": _w((lambda *s: torch.randn(*s, dtype=torch.bfloat16) * 3.2)(D, H * Dh)),
            "wk": _w((lambda *s: torch.randn(*s, dtype=torch.bfloat16) * 3.2)(D, Dh)),
            "wv": _w((lambda *s: torch.randn(*s, dtype=torch.bfloat16) * 1.6)(D, Dh)),
            "wo": _w((lambda *s: torch.randn(*s, dtype=torch.bfloat16) * 1.6)(H * Dh, D)),
        }
    _B_in = _B_setup()

    return {
        "A_x": _A_in["x"],
        "A_wqkv": _A_in["wqkv"],
        "A_wo": _A_in["wo"],
        "B_x": _B_in["x"],
        "B_wq": _B_in["wq"],
        "B_wk": _B_in["wk"],
        "B_wv": _B_in["wv"],
        "B_wo": _B_in["wo"],
        "gate_w": _w((lambda *s: torch.randn(*s, dtype=torch.bfloat16) * 0.05)(512) * 16.0),
    }

def reference(A_x, A_wqkv, A_wo, B_x, B_wq, B_wk, B_wv, B_wo, gate_w):
    def _A_ref(x, wqkv, wo):
        B, S, D = x.shape
        H = 32; Dh = D // H
        qkv = (lambda x, *d: x.permute(*d))((x @ wqkv).reshape(B, S, 3, H, Dh), 2, 0, 3, 1, 4)
        q, k, v = qkv[0], qkv[1], qkv[2]
        scale = Dh ** -0.5
        scores = torch.einsum("bhqd,bhkd->bhqk", q, k) * scale
        p = _softmax(scores, axis=-1)
        o = torch.einsum("bhqk,bhkd->bhqd", p, v)
        return (lambda x, *d: x.permute(*d))(o, 0, 2, 1, 3).reshape(B, S, D) @ wo

    def _B_ref(x, wq, wk, wv, wo):
        B, S, D = x.shape
        H = 32
        Dh = D // H
        q = (lambda x, *d: x.permute(*d))((x @ wq).reshape(B, S, H, Dh), 0, 2, 1, 3)
        k = x @ wk
        v = x @ wv
        scores = torch.einsum("bhqd,bkd->bhqk", q, k) * (Dh ** -0.5)
        p = _softmax(scores, axis=-1)
        o = torch.einsum("bhqk,bkd->bhqd", p, v)
        return (lambda x, *d: x.permute(*d))(o, 0, 2, 1, 3).reshape(B, S, H * Dh) @ wo

    x = A_x
    g = _sigmoid((x * gate_w).sum(-1, keepdims=True))
    a = _A_ref(x, A_wqkv, A_wo)
    b = _B_ref(x, B_wq, B_wk, B_wv, B_wo)
    return g * a + (1 - g) * b
```

```python
class Asm:
    def __init__(self):
        self.L = []
    def __call__(self, s):
        for line in s.split("\n"):
            self.L.append("    " + line.strip() if line.strip() and not line.strip().endswith(":") else line.strip())
    def label(self, n): self.L.append(n + ":")
    def c(self, s): self.L.append("    ; " + s)
    def text(self): return "\n".join(self.L) + "\n"
def vr(b, n=1): return f"v{b}" if n == 1 else f"v[{b}:{b+n-1}]"
def sr(b, n=1): return f"s{b}" if n == 1 else f"s[{b}:{b+n-1}]"
def srd(a, dst, ptr, nbytes):
    a(f"s_mov_b32 s{dst}, s{ptr}")
    a(f"s_and_b32 s{dst+1}, s{ptr+1}, 0xffff")
    a(f"s_mov_b32 s{dst+2}, {nbytes:#x}")
    a(f"s_mov_b32 s{dst+3}, 0x00020000")
def kernel_desc(name, vgpr, sgpr, accum=None, extra=""):
    accum = accum if accum is not None else (vgpr + 3) // 4 * 4
    return f""".section .rodata,"a"
.p2align 6
.amdhsa_kernel {name}
  .amdhsa_next_free_vgpr {vgpr}
  .amdhsa_next_free_sgpr {sgpr}
  .amdhsa_accum_offset {accum}
  .amdhsa_group_segment_fixed_size 0
  .amdhsa_kernarg_size 96
  .amdhsa_user_sgpr_count 2
  .amdhsa_user_sgpr_kernarg_segment_ptr 1
  .amdhsa_system_sgpr_workgroup_id_x 1
{extra}.end_amdhsa_kernel
"""
def kernel_head(name):
    return f""".text
.globl {name}
.p2align 8
.type {name},@function
{name}:
"""
```

```python
from asmlib import *
WS_Q = 0x000000
WS_K = 0x400000
WS_V = 0x620000
WS_G = 0x840000
WS_O = 0x900000
WS_WOT = 0xD00000
WS_USED = 0x1000000
LDS_K = 0
LDS_V = 65536
VSTRIDE = 1040
LDS_ATTN = LDS_V + 65 * VSTRIDE + 64
BIAS = 64.0

def fhex(x):
    import struct
    return "0x%08x" % struct.unpack("<I", struct.pack("<f", x))[0]

WS_DBG = 0xF00000
def emit_stamp(a, idx):
    a(f"s_memtime s[40:41]")
    a(f"s_memrealtime s[42:43]")
    a(f"s_waitcnt lgkmcnt(0)")
    a(f"s_mov_b32 s{48+2*idx}, s40")
    a(f"s_mov_b32 s{49+2*idx}, s42")
def emit_stamp_store(a, n, vtmp, sW=12, sWS=8):
    a(f"s_lshl_b32 s44, s2, 4")
    a(f"s_add_u32 s44, s44, s{sW}")
    a(f"s_lshl_b32 s44, s44, 6")
    a(f"s_add_u32 s44, s44, {WS_DBG}")
    a(f"s_getreg_b32 s45, hwreg(HW_REG_XCC_ID, 0, 4)")
    for i in range(2*n): a(f"v_writelane_b32 v{vtmp}, s{48+i}, {i}")
    a(f"v_writelane_b32 v{vtmp}, s45, 15")
    a(f"v_mbcnt_lo_u32_b32 v{vtmp+1}, -1, 0")
    a(f"v_mbcnt_hi_u32_b32 v{vtmp+1}, -1, v{vtmp+1}")
    a(f"v_cmp_gt_u32 vcc, 16, v{vtmp+1}")
    a(f"v_lshlrev_b32 v{vtmp+1}, 2, v{vtmp+1}")
    a(f"s_and_saveexec_b64 s[46:47], vcc")
    a(f"buffer_store_dword v{vtmp}, v{vtmp+1}, s[{sWS}:{sWS+3}], s44 offen")
    a(f"s_mov_b64 exec, s[46:47]")
def emit_attn(a, NQ, NW, U=8, pfx="AT", stamp=False, zrows=False, bias=BIAS, skip=(), sched=(2, 3, 10), prio=None, half=False, nobar=False):
    per = 16 // NW
    r = 2
    def alloc(n, al=1):
        nonlocal r
        r = (r + al - 1) // al * al
        b = r; r += n; return b
    vLane16 = 1
    vQ = [alloc(4, 2) for _ in range(NQ)]
    vNM = [alloc(16, 2) for _ in range(NQ)]
    vO = [alloc(16, 2) for _ in range(NQ)]
    vX = alloc(16, 2); vY = alloc(16, 2)
    vK = alloc(4, 2); vVa = alloc(4, 2); vVb = alloc(4, 2)
    vIdx = alloc(1); vAk = alloc(1); vAv0 = alloc(1); vAv1 = alloc(1)
    vG = [alloc(1) for _ in range(NQ)]
    vT = alloc(4, 2)
    vHist = alloc(1) if stamp == 'iter' else None
    nv = r
    sWS = 8
    sW, sHead, sQb, sKV, sSrc, sLds, sStep, sLStep, sQoff, sIt, sFlag, sT0, sT1 = 12, 13, 14, 15, 16, 17, 18, 19, 20, 21, 22, 23, 24
    sGoff, sOoff = 25, 26
    a.c("---- attention: setup")
    if stamp: emit_stamp(a, 0)
    a(f"s_load_dwordx2 s[4:5], s[0:1], 88")
    a(f"v_lshrrev_b32 v{vT}, 6, v0")
    a(f"v_and_b32 v{vLane16}, 63, v0")
    a(f"v_readfirstlane_b32 s{sW}, v{vT}")
    a(f"v_and_b32 v{vT+1}, 31, v0")
    a(f"v_lshrrev_b32 v{vT+2}, 5, v{vLane16}")
    a(f"v_lshlrev_b32 v{vAk}, 4, v{vLane16}")
    a(f"s_and_b32 s{sT0}, s2, 7")
    a(f"s_lshr_b32 s{sT1}, s2, 3")
    a(f"s_and_b32 s{sQb}, s{sT1}, 3")
    a(f"s_lshr_b32 s{sT1}, s{sT1}, 2")
    a(f"s_lshl_b32 s{sT0}, s{sT0}, 2")
    a(f"s_and_b32 s{sHead}, s{sT1}, 3")
    a(f"s_add_u32 s{sHead}, s{sHead}, s{sT0}")
    a(f"s_cmp_ge_u32 s{sT1}, 4")
    a(f"s_cselect_b32 s{sKV}, 32, s{sHead}")
    a(f"s_cselect_b32 s{sT0}, 32, 0")
    a(f"s_add_u32 s{sHead}, s{sHead}, s{sT0}")
    a(f"v_lshlrev_b32 v{vT+3}, 4, v{vT+1}")
    a(f"v_cmp_gt_u32 vcc, 16, v{vT+1}")
    a(f"v_mov_b32 v{vAv0}, 64")
    a(f"v_cmp_gt_u32 s[28:29], 28, v{vT+1}")
    a(f"v_cmp_le_u32 s[30:31], 20, v{vT+1}")
    a(f"s_and_b64 s[28:29], s[28:29], s[30:31]")
    a(f"v_cndmask_b32 v{vAv0}, v{vAv0}, 0, s[28:29]")
    a(f"v_cndmask_b32 v{vAv0}, v{vAv0}, v{vT+3}, vcc")
    a(f"v_lshlrev_b32 v{vT+3}, 8, v{vT+2}")
    a(f"v_add_u32 v{vAv0}, v{vAv0}, v{vT+3}")
    a(f"v_add_u32 v{vAv1}, 512, v{vAv0}")
    a(f"v_cmp_eq_u32 vcc, 16, v{vT+1}")
    a(f"v_mov_b32 v{vT+3}, 1024")
    a(f"s_nop 0")
    a(f"v_cndmask_b32 v{vAv0}, v{vAv0}, v{vT+3}, vcc")
    a(f"v_cndmask_b32 v{vAv1}, v{vAv1}, v{vT+3}, vcc")
    if zrows:
        a(f"v_cmp_lt_u32 vcc, 16, v{vT+1}")
        a(f"v_mov_b32 v{vT+3}, 0x30000")
        a(f"s_nop 0")
        a(f"v_cndmask_b32 v{vAv0}, v{vAv0}, v{vT+3}, vcc")
        a(f"v_cndmask_b32 v{vAv1}, v{vAv1}, v{vT+3}, vcc")
    a(f"v_add_u32 v{vAv0}, {LDS_V}, v{vAv0}")
    a(f"v_add_u32 v{vAv1}, {LDS_V}, v{vAv1}")
    a(f"v_mov_b32 v{vLane16}, v{vAk}")
    a(f"s_waitcnt lgkmcnt(0)")
    srd(a, sWS, 4, WS_USED)
    a(f"s_lshl_b32 s{sQoff}, s{sHead}, 16")
    a(f"s_lshl_b32 s{sT0}, s{sQb}, 4")
    a(f"s_mul_i32 s{sT1}, s{sW}, {NQ}")
    a(f"s_add_u32 s{sT0}, s{sT0}, s{sT1}")
    a(f"s_lshl_b32 s{sT1}, s{sT0}, 10")
    a(f"s_add_u32 s{sQoff}, s{sQoff}, s{sT1}")
    a(f"s_add_u32 s{sOoff}, s{sQoff}, {WS_O - WS_Q}")
    a(f"s_lshl_b32 s{sGoff}, s{sT0}, 7")
    a(f"s_add_u32 s{sGoff}, s{sGoff}, {WS_G}")
    a(f"v_lshlrev_b32 v{vT+1}, 2, v{vT+1}")
    for q in range(NQ):
        if q: a(f"s_add_u32 s{sT1}, s{sQoff}, {1024*q}")
        a(f"buffer_load_dwordx4 {vr(vQ[q],4)}, v{vLane16}, s[{sWS}:{sWS+3}], s{sT1 if q else sQoff} offen")
    for q in range(NQ):
        a(f"buffer_load_dword v{vG[q]}, v{vT+1}, s[{sWS}:{sWS+3}], s{sGoff} offen offset:{128*q}")
    a(f"s_lshl_b32 s{sT0}, s{sKV}, 16")
    if per == 1:
        a(f"s_and_b32 s{sT1}, s{sW}, 7")
        a(f"s_lshl_b32 s{sSrc}, s{sT1}, 10")
        a(f"s_add_u32 s{sSrc}, s{sSrc}, s{sT0}")
        a(f"s_mul_i32 s{sLds}, s{sT1}, {VSTRIDE}")
        a(f"s_add_u32 s{sLds}, s{sLds}, {LDS_V}")
        a(f"s_lshl_b32 s{sT1}, s{sT1}, 10")
        a(f"s_cmp_ge_u32 s{sW}, 8")
        a(f"s_cselect_b32 s{sLds}, s{sLds}, s{sT1}")
        a(f"s_mov_b32 s{sLStep}, 8192")
        a(f"s_cselect_b32 s{sLStep}, {8*VSTRIDE}, s{sLStep}")
        a(f"s_mov_b32 s{sT1}, {WS_K}")
        a(f"s_cselect_b32 s{sT1}, {WS_V}, s{sT1}")
        a(f"s_add_u32 s{sSrc}, s{sSrc}, s{sT1}")
        for c in range(8):
            a(f"s_mov_b32 m0, s{sLds}")
            a(f"s_add_u32 s{sLds}, s{sLds}, s{sLStep}")
            a(f"buffer_load_dwordx4 v{vLane16}, s[{sWS}:{sWS+3}], s{sSrc} offen lds")
            a(f"s_add_u32 s{sSrc}, s{sSrc}, 8192")
    else:
        a(f"s_lshl_b32 s{sT1}, s{sW}, 10")
        a(f"s_add_u32 s{sSrc}, s{sT0}, s{sT1}")
        a(f"s_add_u32 s{sStep}, s{sSrc}, {WS_V}")
        a(f"s_add_u32 s{sSrc}, s{sSrc}, {WS_K}")
        a(f"s_mov_b32 s{sLds}, s{sT1}")
        a(f"s_mul_i32 s{sLStep}, s{sW}, {VSTRIDE}")
        a(f"s_add_u32 s{sLStep}, s{sLStep}, {LDS_V}")
        for c in range(8):
            a(f"s_mov_b32 m0, s{sLds}")
            a(f"s_add_u32 s{sLds}, s{sLds}, 8192")
            a(f"buffer_load_dwordx4 v{vLane16}, s[{sWS}:{sWS+3}], s{sSrc} offen lds")
            a(f"s_add_u32 s{sSrc}, s{sSrc}, 8192")
            a(f"s_mov_b32 m0, s{sLStep}")
            a(f"s_add_u32 s{sLStep}, s{sLStep}, {8*VSTRIDE}")
            a(f"buffer_load_dwordx4 v{vLane16}, s[{sWS}:{sWS+3}], s{sStep} offen lds")
            a(f"s_add_u32 s{sStep}, s{sStep}, 8192")
    a(f"s_cmp_lg_u32 s{sW}, 0")
    a(f"s_cbranch_scc1 {pfx}_noones")
    a(f"v_lshrrev_b32 v{vT}, 4, v{vLane16}")
    a(f"v_mul_u32_u24 v{vT}, {VSTRIDE}, v{vT}")
    a(f"v_add_u32 v{vT}, {LDS_V + 1024}, v{vT}")
    for i in range(4): a(f"v_mov_b32 v{vX+i}, 0x3f803f80")
    a(f"ds_write_b128 v{vT}, {vr(vX,4)}")
    a.label(f"{pfx}_noones")
    a(f"v_mov_b32 v{vIdx}, 0xdddddddd")
    a(f"s_mov_b32 s{sFlag}, 0")
    a.c("wait Q, G, chunk 0")
    a(f"s_waitcnt vmcnt({0 if nobar else 7*per}) lgkmcnt(0)")
    a(f"s_barrier")
    if stamp: emit_stamp(a, 1)
    if half:
        a(f"s_cmp_ge_u32 s{sW}, {NW//2}")
        a(f"s_cbranch_scc0 {pfx}_act")
        a(f"s_waitcnt vmcnt(0)")
        if not nobar: a(f"s_barrier")
        a(f"s_endpgm")
        a.label(f"{pfx}_act")
    a.c("---- stand-in max from key tile 0")
    a(f"ds_read_b128 {vr(vK,4)}, v{vAk}")
    a(f"s_waitcnt lgkmcnt(0)")
    bufs = [vX, vY]
    for q in range(NQ):
        a(f"v_mfma_f32_32x32x16_bf16 {vr(bufs[q],16)}, {vr(vK,4)}, {vr(vQ[q],4)}, 0")
    for q in range(NQ):
        for i in range(16): a(f"v_mov_b32 v{vO[q]+i}, 0")
    for q in range(NQ):
        S = bufs[q]
        a(f"v_max3_f32 v{vT}, v{S}, v{S+1}, v{S+2}")
        a(f"v_max3_f32 v{vT+1}, v{S+3}, v{S+4}, v{S+5}")
        for i in range(6, 16, 4):
            a(f"v_max3_f32 v{vT}, v{vT}, v{S+i}, v{S+i+1}")
            if i + 3 < 16: a(f"v_max3_f32 v{vT+1}, v{vT+1}, v{S+i+2}, v{S+i+3}")
        a(f"v_max3_f32 v{vT}, v{vT}, v{S+14}, v{S+15}")
        a(f"v_max_f32 v{vT}, v{vT}, v{vT+1}")
        a(f"v_mov_b32 v{vT+1}, v{vT}")
        a(f"s_nop 1")
        a(f"v_permlane32_swap_b32 v{vT}, v{vT+1}")
        a(f"s_nop 1")
        a(f"v_max_f32 v{vT}, v{vT}, v{vT+1}")
        a(f"v_add_f32 v{vT}, {fhex(bias)}, v{vT}")
        a(f"v_sub_f32 v{vNM[q]}, 0, v{vT}")
        for i in range(1, 16): a(f"v_mov_b32 v{vNM[q]+i}, v{vNM[q]}")
    a.label(f"{pfx}_run")
    a.c("---- pipeline prologue")
    a(f"ds_read_b128 {vr(vK,4)}, v{vAk}")
    if NQ == 2: a(f"ds_read_b128 {vr(vVa,4)}, v{vAv0}")
    for i in range(8): a(f"v_mov_b32 v{vY+8+i}, 0")
    for i in range(4): a(f"v_mov_b32 v{vVb+i}, 0")
    a(f"s_waitcnt lgkmcnt({NQ-1})")
    a(f"v_mfma_f32_32x32x16_bf16 {vr(vX,16)}, {vr(vK,4)}, {vr(vQ[0],4)}, {vr(vNM[0],16)}")
    if NQ == 1:
        a(f"ds_read_b128 {vr(vK,4)}, v{vAk} offset:1024")
        a(f"ds_read_b128 {vr(vVa,4)}, v{vAv0}")
    a(f"s_nop 7")
    a(f"s_nop 3")
    a(f"s_mov_b32 s{sIt}, 0")
    if prio == "young":
        a(f"s_cmp_ge_u32 s{sW}, {NW//2}")
        a(f"s_cbranch_scc0 {pfx}_noprio")
        a(f"s_setprio 1")
        a.label(f"{pfx}_noprio")
    if stamp: emit_stamp(a, 2)
    a(f".p2align 3")
    a.label(f"{pfx}_loop")
    def slot(S, Sp, q, qp, qn, pvb_wait, qk_wait, pva_wait, after_pvb, after_qk, after_pva):
        ex = [f"v_exp_f32 v{S+i}, v{S+i}" for i in range(16)]
        if "exp" in skip: ex = [f"s_nop 1"] * 16
        _a = a
        def a_(x):
            if ("pv" in skip and "smfmac" in x) or ("qk" in skip and "v_mfma" in x): return
            _a(x)
        return slot_(a_, ex, S, Sp, q, qp, qn, pvb_wait, qk_wait, pva_wait, after_pvb, after_qk, after_pva)
    def slot_(a, ex, S, Sp, q, qp, qn, pvb_wait, qk_wait, pva_wait, after_pvb, after_qk, after_pva):
        p1, p2, p3 = sched
        for i in range(0, p1): a(ex[i])
        if pvb_wait is not None: a(f"s_waitcnt lgkmcnt({pvb_wait})")
        a(f"v_smfmac_f32_32x32x32_bf16 {vr(vO[qp],16)}, {vr(vVb,4)}, {vr(Sp+8,8)}, v{vIdx}")
        for s in after_pvb: a(s)
        for i in range(p1, p2): a(ex[i])
        if qk_wait is not None: a(f"s_waitcnt lgkmcnt({qk_wait})")
        a(f"v_mfma_f32_32x32x16_bf16 {vr(Sp,16)}, {vr(vK,4)}, {vr(vQ[qn],4)}, {vr(vNM[qn],16)}")
        for s in after_qk: a(s)
        for i in range(p2, p3): a(ex[i])
        if pva_wait is not None: a(f"s_waitcnt lgkmcnt({pva_wait})")
        a(f"v_smfmac_f32_32x32x32_bf16 {vr(vO[q],16)}, {vr(vVa,4)}, {vr(S,8)}, v{vIdx}")
        for s in after_pva: a(s)
        for i in range(p3, 16): a(ex[i])
    rdK = lambda t: f"ds_read_b128 {vr(vK,4)}, v{vAk} offset:{t*1024}"
    rdVa = lambda t: f"ds_read_b128 {vr(vVa,4)}, v{vAv0} offset:{t*VSTRIDE}"
    rdVb = lambda t: f"ds_read_b128 {vr(vVb,4)}, v{vAv1} offset:{t*VSTRIDE}"
    if NQ == 1:
        for t in range(U):
            S, Sp = (vX, vY) if t % 2 == 0 else (vY, vX)
            slot(S, Sp, 0, 0, 0, 2, 2, 2, [rdVb(t)], [rdK(t+2)], [rdVa(t+1)])
    else:
        for t in range(U):
            slot(vX, vY, 0, 1, 1, None, None, 2, [rdVb(t)], [rdK(t+1)], [])
            slot(vY, vX, 1, 0, 0, 1, 0, None, [], [], [rdVa(t+1)])
    if stamp == "iter":
        a(f"s_memtime s[40:41]")
        a(f"s_memrealtime s[42:43]")
        a(f"s_waitcnt lgkmcnt(0)")
        a(f"s_lshl_b32 s44, s{sIt}, 1")
        a(f"s_mov_b32 m0, s44")
        a(f"s_nop 3")
        a(f"v_writelane_b32 v{vHist}, s40, m0")
        a(f"s_add_u32 s44, s44, 1")
        a(f"s_mov_b32 m0, s44")
        a(f"s_nop 3")
        a(f"v_writelane_b32 v{vHist}, s42, m0")
    a(f"v_add_u32 v{vAk}, {U*1024}, v{vAk}")
    a(f"v_add_u32 v{vAv0}, {U*VSTRIDE}, v{vAv0}")
    a(f"v_add_u32 v{vAv1}, {U*VSTRIDE}, v{vAv1}")
    a(f"s_add_u32 s{sIt}, s{sIt}, 1")
    a(f"s_cmp_eq_u32 s{sIt}, {64//U}")
    a(f"s_cbranch_scc1 {pfx}_done")
    if nobar:
        a(f"s_branch {pfx}_loop")
    else:
        a(f"s_cmp_eq_u32 s{sIt}, 1")
        a(f"s_cbranch_scc0 {pfx}_loop")
        a(f"s_cmp_eq_u32 s{sFlag}, 0")
        a(f"s_cbranch_scc0 {pfx}_loop")
        a(f"s_waitcnt vmcnt(0)")
        a(f"s_barrier")
        a(f"s_branch {pfx}_loop")
    a.label(f"{pfx}_done")
    if stamp: emit_stamp(a, 3)
    a.c("---- drain: last PVb")
    a(f"s_waitcnt lgkmcnt(0)")
    a(f"s_nop 1")
    a(f"v_smfmac_f32_32x32x32_bf16 {vr(vO[NQ-1],16)}, {vr(vVb,4)}, {vr(vY+8,8)}, v{vIdx}")
    a(f"v_subrev_u32 v{vAk}, {64*1024}, v{vAk}")
    a(f"v_subrev_u32 v{vAv0}, {64*VSTRIDE}, v{vAv0}")
    a(f"v_subrev_u32 v{vAv1}, {64*VSTRIDE}, v{vAv1}")
    a(f"s_nop 7")
    a(f"s_nop 3")
    a.c("---- check validity")
    a(f"s_cmp_lg_u32 s{sFlag}, 0")
    a(f"s_cbranch_scc1 {pfx}_store")
    a(f"s_mov_b64 s[28:29], -1")
    a(f"s_mov_b32 s{sT0}, {fhex(2.0**100)}")
    for q in range(NQ):
        O = vO[q]
        a(f"v_max3_f32 v{vT}, abs(v{O}), abs(v{O+1}), abs(v{O+2})")
        a(f"v_max3_f32 v{vT}, abs(v{O+3}), abs(v{O+4}), v{vT}")
        a(f"v_max3_f32 v{vT}, abs(v{O+5}), abs(v{O+6}), v{vT}")
        a(f"v_add_f32 v{vT+1}, v{O}, v{O+1}")
        a(f"v_add_f32 v{vT+2}, v{O+2}, v{O+3}")
        a(f"v_add_f32 v{vT+3}, v{O+4}, v{O+5}")
        a(f"v_add_f32 v{vT+1}, v{vT+1}, v{vT+2}")
        a(f"v_add_f32 v{vT+2}, v{O+6}, v{O+7}")
        a(f"v_add_f32 v{vT+1}, v{vT+1}, v{vT+3}")
        a(f"v_max_f32 v{vT}, abs(v{O+7}), v{vT}")
        a(f"v_add_f32 v{vT+1}, v{vT+1}, v{vT+2}")
        a(f"v_cmp_gt_f32 vcc, s{sT0}, v{vT}")
        a(f"s_and_b64 s[28:29], s[28:29], vcc")
        a(f"v_cmp_o_f32 vcc, v{vT+1}, v{vT+1}")
        a(f"s_and_b64 s[28:29], s[28:29], vcc")
        a(f"v_mov_b32 v{vT}, v{O+8}")
        a(f"v_mov_b32 v{vT+1}, v{O+8}")
        a(f"s_nop 1")
        a(f"v_permlane32_swap_b32 v{vT}, v{vT+1}")
        a(f"s_nop 1")
        a(f"v_cmp_gt_f32 vcc, s{sT0}, v{vT}")
        a(f"s_and_b64 s[28:29], s[28:29], vcc")
    a(f"s_cmp_eq_u64 s[28:29], -1")
    a(f"s_cbranch_scc1 {pfx}_store")
    a.c("---- fallback: true row max (exact), then rerun")
    a(f"s_mov_b32 s{sFlag}, 1")
    for q in range(NQ):
        a(f"v_mov_b32 v{vNM[q]}, 0xff800000")
    a(f"s_mov_b32 s{sIt}, 0")
    a.label(f"{pfx}_fb_loop")
    a(f"ds_read_b128 {vr(vK,4)}, v{vAk}")
    a(f"s_waitcnt lgkmcnt(0)")
    for q in range(NQ):
        a(f"v_mfma_f32_32x32x16_bf16 {vr(bufs[q],16)}, {vr(vK,4)}, {vr(vQ[q],4)}, 0")
    a(f"s_nop 7"); a(f"s_nop 7")
    for q in range(NQ):
        S = bufs[q]
        for i in range(0, 16, 2):
            a(f"v_max3_f32 v{vNM[q]}, v{vNM[q]}, v{S+i}, v{S+i+1}")
    a(f"v_add_u32 v{vAk}, 1024, v{vAk}")
    a(f"s_add_u32 s{sIt}, s{sIt}, 1")
    a(f"s_cmp_lt_u32 s{sIt}, 64")
    a(f"s_cbranch_scc1 {pfx}_fb_loop")
    a(f"v_subrev_u32 v{vAk}, {64*1024}, v{vAk}")
    for q in range(NQ):
        a(f"v_mov_b32 v{vT+1}, v{vNM[q]}")
        a(f"v_mov_b32 v{vT}, v{vNM[q]}")
        a(f"s_nop 1")
        a(f"v_permlane32_swap_b32 v{vT}, v{vT+1}")
        a(f"s_nop 1")
        a(f"v_max_f32 v{vT}, v{vT}, v{vT+1}")
        a(f"v_sub_f32 v{vNM[q]}, 0, v{vT}")
        for i in range(1, 16): a(f"v_mov_b32 v{vNM[q]+i}, v{vNM[q]}")
        for i in range(16): a(f"v_mov_b32 v{vO[q]+i}, 0")
    a(f"s_branch {pfx}_run")
    a.label(f"{pfx}_store")
    a.c("---- normalise, gate, store")
    for q in range(NQ):
        O = vO[q]
        a(f"v_mov_b32 v{vT}, v{O+8}")
        a(f"v_mov_b32 v{vT+1}, v{O+8}")
        a(f"s_nop 1")
        a(f"v_permlane32_swap_b32 v{vT}, v{vT+1}")
        a(f"s_nop 1")
        a(f"v_rcp_f32 v{vT}, v{vT}")
        a(f"v_sub_f32 v{vT+1}, 1.0, v{vG[q]}")
        a(f"s_cmp_ge_u32 s{sHead}, 32")
        a(f"s_cselect_b64 vcc, -1, 0")
        a(f"v_cndmask_b32 v{vT+1}, v{vG[q]}, v{vT+1}, vcc")
        a(f"v_mul_f32 v{vT}, v{vT}, v{vT+1}")
        for i in range(8): a(f"v_mul_f32 v{O+i}, v{O+i}, v{vT}")
        for i in range(4): a(f"v_cvt_pk_bf16_f32 v{vX+4*q+i}, v{O+2*i}, v{O+2*i+1}")
        if q: a(f"s_add_u32 s{sOoff}, s{sOoff}, 1024")
        a(f"buffer_store_dwordx4 {vr(vX+4*q,4)}, v{vLane16}, s[{sWS}:{sWS+3}], s{sOoff} offen")
    if stamp:
        a("s_waitcnt vmcnt(0)")
        emit_stamp(a, 4)
        emit_stamp_store(a, 5, vY)
        if stamp == "iter":
            a(f"s_add_u32 s44, s44, 0x40000")
            a(f"s_and_saveexec_b64 s[46:47], vcc")
            a(f"buffer_store_dword v{vHist}, v{vY+1}, s[8:11], s44 offen")
            a(f"s_mov_b64 exec, s[46:47]")
    return nv

def build(NQ, NW, U=8, stamp=False, **kw):
    a = Asm()
    name = "attn_kernel"
    a(f"s_cmp_ge_u32 s2, 256")
    a(f"s_cbranch_scc1 AT_end")
    nv = emit_attn(a, NQ, NW, U, stamp=stamp, **kw)
    a.label("AT_end")
    a("s_endpgm")
    hdr = f"; @launch kernel={name} grid=(256,1,1) block=({NW*64},1,1) lds={LDS_ATTN}\n.amdgcn_target \"amdgcn-amd-amdhsa--gfx950\"\n"
    return hdr + kernel_head(name) + a.text() + kernel_desc(name, max(nv, 8), 72), nv
if __name__ == "__main__":
    V = {
      "n2z": dict(NQ=2, NW=8, zrows=True),
      "n2e": dict(NQ=2, NW=8, zrows=True, bias=96.0, sched=(2, 7, 10)),
      "n2e16": dict(NQ=2, NW=8, U=16, zrows=True, bias=96.0, sched=(2, 7, 10)),
      "n2ep": dict(NQ=2, NW=8, zrows=True, bias=96.0, sched=(2, 7, 10), prio="young"),
      "n2f": dict(NQ=2, NW=8, zrows=True, bias=96.0, sched=(2, 6, 11)),
      "n1e": dict(NQ=1, NW=16, zrows=True, bias=96.0, sched=(2, 7, 10)),
      "n1e16": dict(NQ=1, NW=16, U=16, zrows=True, bias=96.0, sched=(2, 7, 10)),
      "n2h": dict(NQ=2, NW=8, U=16, zrows=True, bias=96.0, sched=(2, 7, 10), half=True, nobar=True),
      "n2hf": dict(NQ=2, NW=8, U=16, zrows=True, bias=96.0, sched=(2, 6, 11), half=True, nobar=True),
      "n2hz": dict(NQ=2, NW=8, U=16, zrows=True, bias=96.0, sched=(2, 3, 10), half=True, nobar=True),
      "n2nb": dict(NQ=2, NW=8, U=16, zrows=True, bias=96.0, sched=(2, 7, 10), nobar=True),
      "n1h": dict(NQ=1, NW=16, U=16, zrows=True, bias=96.0, sched=(2, 7, 10), half=True, nobar=True),
      "n1nb": dict(NQ=1, NW=16, U=16, zrows=True, bias=96.0, sched=(2, 7, 10), nobar=True),
      "n2e200": dict(NQ=2, NW=8, zrows=True, bias=200.0, sched=(2, 7, 10)),
    }
    for n, kw in V.items():
        kw.setdefault("stamp", True)
        s, nv = build(**kw)
        open(f"attn_{n}.s", "w").write(s)
        print(n, "vgprs", nv)
```

```python
from asmlib import *
from gen_attn import WS_O, WS_USED
OSLOT = 32768
LDS_OUT = 4 * OSLOT

def emit_out(a, pfx="OP"):
    sWA, sWB, sWS, sOut = 8, 12, 16, 20
    sW, sR, sC, sT0, sT1, sT2, sOsrc, sWsrc, sLds = 24, 25, 26, 27, 28, 29, 30, 31, 32
    vLane, vL16, vWo, vOa, vOb, vWa, vWb, vT = 1, 2, 3, 4, 5, 6, 7, 8
    vOf = [12, 16]; vWf = [20, 24]; vAcc = 32; vP = 48
    nv = 64
    a.c("---- output projection: setup")
    a("s_load_dwordx2 s[4:5], s[0:1], 16")
    a("s_load_dwordx2 s[6:7], s[0:1], 56")
    a("s_load_dwordx2 s[34:35], s[0:1], 72")
    a("s_load_dwordx2 s[36:37], s[0:1], 88")
    a(f"v_lshrrev_b32 v{vT}, 6, v0")
    a(f"v_and_b32 v{vLane}, 63, v0")
    a(f"v_readfirstlane_b32 s{sW}, v{vT}")
    a(f"s_and_b32 s{sT0}, s2, 7"); a(f"s_lshr_b32 s{sT1}, s2, 3")
    a(f"s_lshl_b32 s{sR}, s{sT0}, 2"); a(f"s_and_b32 s{sT2}, s{sT1}, 3"); a(f"s_add_u32 s{sR}, s{sR}, s{sT2}")
    a(f"s_lshr_b32 s{sC}, s{sT1}, 2")
    a(f"v_lshlrev_b32 v{vL16}, 4, v{vLane}")
    a(f"v_lshrrev_b32 v{vT}, 5, v{vLane}"); a(f"v_lshlrev_b32 v{vT}, 2, v{vT}")
    a(f"v_bfe_u32 v{vT+1}, v{vLane}, 2, 2"); a(f"v_add_u32 v{vT}, v{vT}, v{vT+1}"); a(f"v_lshlrev_b32 v{vT}, 10, v{vT}")
    a(f"v_bfe_u32 v{vT+1}, v{vLane}, 4, 1"); a(f"v_lshl_add_u32 v{vT}, v{vT+1}, 6, v{vT}")
    a(f"v_and_b32 v{vT+1}, 3, v{vLane}"); a(f"v_lshl_add_u32 v{vWo}, v{vT+1}, 4, v{vT}")
    a(f"s_lshr_b32 s{sT0}, s{sW}, 2"); a(f"s_lshl_b32 s{sT0}, s{sT0}, 13")
    a(f"s_and_b32 s{sT1}, s{sW}, 1"); a(f"s_lshl_b32 s{sT1}, s{sT1}, 10"); a(f"s_add_u32 s{sT0}, s{sT0}, s{sT1}")
    a(f"v_add_u32 v{vOa}, s{sT0}, v{vL16}")
    a(f"v_add_u32 v{vOb}, {2*OSLOT}, v{vOa}")
    a(f"v_lshrrev_b32 v{vT}, 5, v{vLane}"); a(f"v_lshlrev_b32 v{vT}, 9, v{vT}")
    a(f"v_bfe_u32 v{vT+1}, v{vLane}, 2, 2"); a(f"v_lshl_add_u32 v{vT}, v{vT+1}, 6, v{vT}")
    a(f"v_bfe_u32 v{vT+1}, v{vLane}, 4, 1"); a(f"v_lshl_add_u32 v{vT}, v{vT+1}, 5, v{vT}")
    a(f"v_and_b32 v{vT+1}, 3, v{vLane}"); a(f"v_lshl_add_u32 v{vT}, v{vT+1}, 3, v{vT}")
    a(f"s_lshr_b32 s{sT0}, s{sW}, 2"); a(f"s_lshl_b32 s{sT0}, s{sT0}, 13")
    a(f"s_bfe_u32 s{sT1}, s{sW}, 0x10001"); a(f"s_lshl_b32 s{sT1}, s{sT1}, 8"); a(f"s_add_u32 s{sT0}, s{sT0}, s{sT1}"); a(f"s_add_u32 s{sT0}, s{sT0}, 16384")
    a(f"v_add_u32 v{vWa}, s{sT0}, v{vT}")
    a(f"v_add_u32 v{vWb}, {2*OSLOT}, v{vWa}")
    a("s_waitcnt lgkmcnt(0)")
    srd(a, sWA, 4, 512*1024); srd(a, sWB, 6, 512*1024); srd(a, sWS, 36, WS_USED); srd(a, sOut, 34, 2048*1024)
    a(f"s_lshl_b32 s{sOsrc}, s{sW}, 16"); a(f"s_lshl_b32 s{sT0}, s{sR}, 11"); a(f"s_add_u32 s{sOsrc}, s{sOsrc}, s{sT0}"); a(f"s_add_u32 s{sOsrc}, s{sOsrc}, {WS_O}")
    a(f"s_lshl_b32 s{sWsrc}, s{sW}, 14"); a(f"s_lshl_b32 s{sT0}, s{sC}, 7"); a(f"s_add_u32 s{sWsrc}, s{sWsrc}, s{sT0}")
    def dma_chunk(i):
        slot = i % 4
        Wsrd = sWA if i < 4 else sWB
        a(f"s_lshl_b32 s{sT0}, s{sW}, 11")
        a(f"s_add_u32 s{sLds}, s{sT0}, {slot*OSLOT}")
        a(f"s_mov_b32 m0, s{sLds}")
        a(f"s_add_u32 s{sLds}, s{sLds}, 1024")
        a(f"buffer_load_dwordx4 v{vL16}, s[{sWS}:{sWS+3}], s{sOsrc} offen lds")
        a(f"s_mov_b32 m0, s{sLds}")
        a(f"s_add_u32 s{sT1}, s{sOsrc}, 1024")
        a(f"buffer_load_dwordx4 v{vL16}, s[{sWS}:{sWS+3}], s{sT1} offen lds")
        a(f"s_add_u32 s{sLds}, s{sLds}, {16384-1024}")
        a(f"s_mov_b32 m0, s{sLds}")
        a(f"s_add_u32 s{sLds}, s{sLds}, 1024")
        a(f"s_add_u32 s{sT1}, s{sWsrc}, {(i % 4) * 8 * 16384}")
        a(f"buffer_load_dwordx4 v{vWo}, s[{Wsrd}:{Wsrd+3}], s{sT1} offen lds")
        a(f"s_mov_b32 m0, s{sLds}")
        a(f"s_add_u32 s{sT1}, s{sT1}, 8192")
        a(f"buffer_load_dwordx4 v{vWo}, s[{Wsrd}:{Wsrd+3}], s{sT1} offen lds")
        a(f"s_add_u32 s{sOsrc}, s{sOsrc}, {8*65536}")
    for i in range(4): dma_chunk(i)
    for i in range(16): a(f"v_mov_b32 v{vAcc+i}, 0")
    def reads(i, s, buf):
        slot = i % 4
        oa = vOa if slot < 2 else vOb; wa = vWa if slot < 2 else vWb
        o = (slot % 2) * OSLOT
        a(f"ds_read_b128 {vr(vOf[buf],4)}, v{oa} offset:{o + s*2048}")
        a(f"ds_read_b64_tr_b16 {vr(vWf[buf],2)}, v{wa} offset:{o + s*2048}")
        a(f"ds_read_b64_tr_b16 {vr(vWf[buf]+2,2)}, v{wa} offset:{o + s*2048 + 1024}")
    WAITS = [12, 8, 8, 8, 8, 8, 4, 0]
    for i in range(8):
        a(f"s_waitcnt vmcnt({WAITS[i]})")
        a("s_barrier")
        if 1 <= i <= 4: dma_chunk(i + 3)
        reads(i, 0, 0)
        for s in range(4):
            buf = s % 2
            if s < 3:
                reads(i, s + 1, 1 - buf); a("s_waitcnt lgkmcnt(3)")
            else:
                a("s_waitcnt lgkmcnt(0)")
            a(f"v_mfma_f32_32x32x16_bf16 {vr(vAcc,16)}, {vr(vWf[buf],4)}, {vr(vOf[buf],4)}, {vr(vAcc,16)}")
    a.c("---- combine the two K halves through LDS, store")
    a("s_barrier")
    a("s_nop 7"); a("s_nop 3")
    a(f"s_and_b32 s{sT0}, s{sW}, 3"); a(f"s_lshl_b32 s{sT0}, s{sT0}, 12")
    a(f"s_lshr_b32 s{sT1}, s{sW}, 2")
    a(f"s_lshl_b32 s{sT2}, s{sT1}, 11"); a(f"s_add_u32 s{sT2}, s{sT2}, s{sT0}")
    a(f"v_add_u32 v{vT}, s{sT2}, v{vL16}")
    a(f"s_xor_b32 s{sT2}, s{sT2}, 2048")
    a(f"v_add_u32 v{vT+1}, s{sT2}, v{vL16}")
    a(f"s_cmp_eq_u32 s{sT1}, 0"); a(f"s_cbranch_scc0 {pfx}_k1")
    a(f"ds_write_b128 v{vT}, {vr(vAcc+8,4)}"); a(f"ds_write_b128 v{vT}, {vr(vAcc+12,4)} offset:1024")
    a("s_waitcnt lgkmcnt(0)"); a("s_barrier")
    a(f"ds_read_b128 {vr(vP,4)}, v{vT+1}"); a(f"ds_read_b128 {vr(vP+4,4)}, v{vT+1} offset:1024")
    a("s_waitcnt lgkmcnt(0)")
    for i in range(8): a(f"v_add_f32 v{vP+i}, v{vP+i}, v{vAcc+i}")
    a(f"s_branch {pfx}_st")
    a.label(f"{pfx}_k1")
    a(f"ds_write_b128 v{vT}, {vr(vAcc,4)}"); a(f"ds_write_b128 v{vT}, {vr(vAcc+4,4)} offset:1024")
    a("s_waitcnt lgkmcnt(0)"); a("s_barrier")
    a(f"ds_read_b128 {vr(vP,4)}, v{vT+1}"); a(f"ds_read_b128 {vr(vP+4,4)}, v{vT+1} offset:1024")
    a("s_waitcnt lgkmcnt(0)")
    for i in range(8): a(f"v_add_f32 v{vP+i}, v{vP+i}, v{vAcc+8+i}")
    a.label(f"{pfx}_st")
    for i in range(4): a(f"v_cvt_pk_bf16_f32 v{vOf[0]+i}, v{vP+2*i}, v{vP+2*i+1}")
    a("s_nop 1")
    a(f"v_permlane32_swap_b32 v{vOf[0]}, v{vOf[0]+2}")
    a(f"v_permlane32_swap_b32 v{vOf[0]+1}, v{vOf[0]+3}")
    a(f"v_and_b32 v{vT}, 31, v{vLane}"); a(f"v_lshlrev_b32 v{vT}, 10, v{vT}")
    a(f"v_lshrrev_b32 v{vT+1}, 5, v{vLane}"); a(f"v_lshl_add_u32 v{vT}, v{vT+1}, 4, v{vT}")
    a(f"s_lshl_b32 s{sT0}, s{sR}, 16"); a(f"s_and_b32 s{sT1}, s{sW}, 1"); a(f"s_lshl_b32 s{sT1}, s{sT1}, 15"); a(f"s_add_u32 s{sT0}, s{sT0}, s{sT1}")
    a(f"s_lshl_b32 s{sT1}, s{sC}, 7"); a(f"s_add_u32 s{sT0}, s{sT0}, s{sT1}")
    a(f"s_bfe_u32 s{sT1}, s{sW}, 0x10001"); a(f"s_lshl_b32 s{sT1}, s{sT1}, 6"); a(f"s_add_u32 s{sT0}, s{sT0}, s{sT1}")
    a(f"s_lshr_b32 s{sT1}, s{sW}, 2"); a(f"s_lshl_b32 s{sT1}, s{sT1}, 5"); a(f"s_add_u32 s{sT0}, s{sT0}, s{sT1}")
    a(f"buffer_store_dwordx4 {vr(vOf[0],4)}, v{vT}, s[{sOut}:{sOut+3}], s{sT0} offen")
    return nv

def build():
    a = Asm(); name = "out_kernel"
    a("s_cmp_ge_u32 s2, 256"); a("s_cbranch_scc1 OP_exit")
    nv = emit_out(a)
    a.label("OP_exit"); a("s_endpgm")
    hdr = f"; @launch kernel={name} grid=(256,1,1) block=(512,1,1) lds={LDS_OUT}\n.amdgcn_target \"amdgcn-amd-amdhsa--gfx950\"\n"
    return hdr + kernel_head(name) + a.text() + kernel_desc(name, nv, 64)
if __name__ == "__main__":
    open("out.s", "w").write(build())
```

```python
from asmlib import *
from gen_attn import WS_Q, WS_K, WS_V, WS_G, WS_O, WS_USED, fhex
SLOT = 36864
LDS_PROJ = 4 * SLOT
QSCALE = 0.25 * 1.4426950408889634

def emit_proj(a, pfx="PJ"):
    sX, sW_, sWS, sE = 8, 12, 16, 20
    sW, sR, sC, sTyp, sLdW, sT0, sT1, sT2 = 24, 25, 26, 27, 28, 29, 30, 31
    sXsrc, sWsrc, sEsrc, sLds = 32, 33, 34, 35
    sExtra = 36
    vLane, vXo0, vXo1, vWo, vEo = 1, 2, 3, 4, 5
    vXa = [6, 7, 8, 9]; vXb = [10, 11, 12, 13]; vWa, vWb = 14, 15
    vT = 16
    vEx, vEw = 20, 21
    vXf = [[24, 28], [32, 36]]
    vWf = [40, 44]
    vAcc = [48, 64]
    vEAcc = 80
    vEXf = 84; vEWf = 88
    vGW = 96
    nv = 160
    a.c("---- projection: setup")
    a("s_load_dwordx4 s[4:7], s[0:1], 0")
    a("s_load_dwordx2 s[38:39], s[0:1], 32")
    a("s_load_dwordx4 s[40:43], s[0:1], 40")
    a("s_load_dwordx2 s[44:45], s[0:1], 64")
    a("s_load_dwordx2 s[46:47], s[0:1], 88")
    a(f"v_lshrrev_b32 v{vT}, 6, v0")
    a(f"v_and_b32 v{vLane}, 63, v0")
    a(f"v_readfirstlane_b32 s{sW}, v{vT}")
    a(f"s_and_b32 s{sT0}, s2, 7"); a(f"s_lshr_b32 s{sT1}, s2, 3")
    a(f"s_and_b32 s{sR}, s{sT0}, 1"); a(f"s_lshl_b32 s{sR}, s{sR}, 3"); a(f"s_and_b32 s{sT2}, s{sT1}, 7"); a(f"s_add_u32 s{sR}, s{sR}, s{sT2}")
    a(f"s_lshr_b32 s{sC}, s{sT0}, 1"); a(f"s_lshl_b32 s{sC}, s{sC}, 2"); a(f"s_lshr_b32 s{sT2}, s{sT1}, 3"); a(f"s_add_u32 s{sC}, s{sC}, s{sT2}")
    a(f"s_lshr_b32 s{sTyp}, s{sC}, 2")
    a(f"v_lshrrev_b32 v{vT}, 3, v{vLane}")
    a(f"v_lshrrev_b32 v{vT+1}, 4, v{vLane}")
    a(f"v_and_b32 v{vT+2}, 7, v{vLane}")
    a(f"v_xor_b32 v{vT+3}, v{vT+2}, v{vT+1}")
    a(f"v_lshlrev_b32 v{vT+3}, 4, v{vT+3}")
    a(f"v_lshl_add_u32 v{vXo0}, v{vT}, 10, v{vT+3}")
    a(f"v_xor_b32 v{vXo1}, 64, v{vXo0}")
    a(f"v_add_u32 v{vXo1}, 8192, v{vXo1}")
    a(f"v_lshrrev_b32 v{vT}, 4, v{vLane}")
    a(f"v_lshlrev_b32 v{vT}, 6, v{vT}")
    a(f"v_and_b32 v{vT+1}, 3, v{vLane}")
    a(f"v_lshl_add_u32 v{vT}, v{vT+1}, 4, v{vT}")
    a(f"v_bfe_u32 v{vT+1}, v{vLane}, 2, 2")
    a(f"s_cmp_eq_u32 s{sTyp}, 3")
    a(f"s_cselect_b32 s{sLdW}, 1024, 0")
    a(f"s_cbranch_scc1 {pfx}_ld")
    a(f"s_mov_b32 s{sLdW}, 3072")
    a.label(f"{pfx}_ld")
    a(f"v_mul_lo_u32 v{vT+1}, v{vT+1}, s{sLdW}")
    a(f"v_add_u32 v{vWo}, v{vT}, v{vT+1}")
    a(f"v_lshlrev_b32 v{vEo}, 4, v{vLane}")
    a(f"v_and_b32 v{vT}, 31, v{vLane}")
    a(f"v_lshrrev_b32 v{vT+1}, 5, v{vLane}")
    a(f"v_bfe_u32 v{vT+2}, v{vLane}, 1, 3")
    a(f"s_and_b32 s{sT0}, s{sW}, 1")
    a(f"s_lshl_b32 s{sT0}, s{sT0}, 13")
    a(f"v_lshlrev_b32 v{vT}, 7, v{vT}")
    a(f"v_add_u32 v{vT}, s{sT0}, v{vT}")
    for s in range(4):
        a(f"v_add_u32 v{vT+3}, {2*s}, v{vT+1}")
        a(f"v_xor_b32 v{vT+3}, v{vT+3}, v{vT+2}")
        a(f"v_lshl_add_u32 v{vXa[s]}, v{vT+3}, 4, v{vT}")
        a(f"v_add_u32 v{vXb[s]}, {2*SLOT}, v{vXa[s]}")
    a(f"v_lshlrev_b32 v{vT+1}, 11, v{vT+1}")
    a(f"v_bfe_u32 v{vT+2}, v{vLane}, 2, 2")
    a(f"v_lshl_add_u32 v{vT+1}, v{vT+2}, 6, v{vT+1}")
    a(f"v_bfe_u32 v{vT+2}, v{vLane}, 4, 1")
    a(f"v_lshl_add_u32 v{vT+1}, v{vT+2}, 5, v{vT+1}")
    a(f"v_and_b32 v{vT+2}, 3, v{vLane}")
    a(f"v_lshl_add_u32 v{vT+1}, v{vT+2}, 3, v{vT+1}")
    a(f"s_lshr_b32 s{sT0}, s{sW}, 1"); a(f"s_lshl_b32 s{sT0}, s{sT0}, 8"); a(f"s_add_u32 s{sT0}, s{sT0}, 16384")
    a(f"v_add_u32 v{vWa}, s{sT0}, v{vT+1}")
    a(f"v_add_u32 v{vWb}, {2*SLOT}, v{vWa}")
    a(f"v_and_b32 v{vT}, 15, v{vLane}")
    a(f"v_lshrrev_b32 v{vT+1}, 4, v{vLane}")
    a(f"v_bfe_u32 v{vT+2}, v{vLane}, 1, 3")
    a(f"v_xor_b32 v{vT+2}, v{vT+2}, v{vT+1}")
    a(f"v_lshlrev_b32 v{vT+2}, 4, v{vT+2}")
    a(f"v_lshl_add_u32 v{vEx}, v{vT}, 7, v{vT+2}")
    a(f"s_and_b32 s{sT0}, s{sC}, 7"); a(f"s_lshl_b32 s{sT0}, s{sT0}, 11")
    a(f"v_add_u32 v{vEx}, s{sT0}, v{vEx}")
    a(f"v_bfe_u32 v{vT}, v{vLane}, 2, 2")
    a(f"v_lshl_add_u32 v{vT}, v{vT+1}, 3, v{vT}")
    a(f"v_lshlrev_b32 v{vT}, 5, v{vT}")
    a(f"v_and_b32 v{vT+2}, 3, v{vLane}")
    a(f"v_lshl_add_u32 v{vEw}, v{vT+2}, 3, v{vT}")
    a(f"s_cmp_eq_u32 s{sW}, 1")
    a(f"s_cselect_b32 s{sT0}, 2048, 0")
    a(f"s_add_u32 s{sT0}, s{sT0}, 32768")
    a(f"v_add_u32 v{vEw}, s{sT0}, v{vEw}")
    a("s_waitcnt lgkmcnt(0)")
    srd(a, sX, 4, 2048*1024)
    a(f"s_cmp_eq_u32 s{sTyp}, 3")
    a(f"s_cselect_b32 s{sW_}, s38, s6"); a(f"s_cselect_b32 s{sW_+1}, s39, s7"); a(f"s_and_b32 s{sW_+1}, s{sW_+1}, 0xffff")
    a(f"s_mov_b32 s{sW_+2}, {512*3072}"); a(f"s_cselect_b32 s{sW_+2}, {512*1024}, s{sW_+2}") if False else None
    a(f"s_lshl_b32 s{sW_+2}, s{sLdW}, 9")
    a(f"s_mov_b32 s{sW_+3}, 0x00020000")
    srd(a, sWS, 46, WS_USED)
    a(f"s_cmp_ge_u32 s{sW}, 4")
    a(f"s_cselect_b32 s{sE}, s42, s40"); a(f"s_cselect_b32 s{sE+1}, s43, s41"); a(f"s_and_b32 s{sE+1}, s{sE+1}, 0xffff")
    a(f"s_cmp_lt_u32 s{sC}, 8")
    a(f"s_cselect_b32 s{sE+2}, 16384, 0"); a(f"s_mov_b32 s{sE+3}, 0x00020000")
    a(f"s_cselect_b32 s{sExtra}, 1, 0")
    a(f"s_cmp_eq_u32 s{sW}, 2"); a(f"s_cselect_b32 s{sT0}, s{sExtra}, 0")
    a(f"s_cmp_eq_u32 s{sT0}, 0"); a(f"s_cbranch_scc1 {pfx}_nogw")
    srd(a, 48, 44, 1024)
    a(f"v_lshrrev_b32 v{vT}, 4, v{vLane}"); a(f"v_lshlrev_b32 v{vT}, 4, v{vT}")
    for s in range(16):
        a(f"buffer_load_dwordx4 {vr(vGW+4*s,4)}, v{vT}, s[48:51], 0 offen offset:{64*s}")
    a.label(f"{pfx}_nogw")
    a(f"s_lshl_b32 s{sXsrc}, s{sR}, 17"); a(f"s_lshl_b32 s{sT0}, s{sW}, 14"); a(f"s_add_u32 s{sXsrc}, s{sXsrc}, s{sT0}")
    a(f"s_mul_i32 s{sWsrc}, s{sW}, s{sLdW}"); a(f"s_lshl_b32 s{sWsrc}, s{sWsrc}, 3")
    a(f"s_cmp_eq_u32 s{sTyp}, 3"); a(f"s_cselect_b32 s{sT0}, 12, 0"); a(f"s_sub_u32 s{sT0}, s{sC}, s{sT0}"); a(f"s_lshl_b32 s{sT0}, s{sT0}, 8")
    a(f"s_add_u32 s{sWsrc}, s{sWsrc}, s{sT0}")
    a(f"s_and_b32 s{sEsrc}, s{sW}, 3"); a(f"s_lshl_b32 s{sEsrc}, s{sEsrc}, 9")
    def dma_chunk(i):
        slot = i % 4
        a(f"s_lshl_b32 s{sT0}, s{sW}, 11")
        a(f"s_add_u32 s{sLds}, s{sT0}, {slot*SLOT}")
        a(f"s_mov_b32 m0, s{sLds}")
        a(f"s_add_u32 s{sLds}, s{sLds}, 1024")
        a(f"buffer_load_dwordx4 v{vXo0}, s[{sX}:{sX+3}], s{sXsrc} offen lds")
        a(f"s_mov_b32 m0, s{sLds}")
        a(f"s_add_u32 s{sLds}, s{sLds}, {16384-1024}")
        a(f"buffer_load_dwordx4 v{vXo1}, s[{sX}:{sX+3}], s{sXsrc} offen lds")
        a(f"s_mov_b32 m0, s{sLds}")
        a(f"s_add_u32 s{sLds}, s{sLds}, 1024")
        a(f"buffer_load_dwordx4 v{vWo}, s[{sW_}:{sW_+3}], s{sWsrc} offen lds")
        a(f"s_mov_b32 m0, s{sLds}")
        a(f"s_lshl_b32 s{sT1}, s{sLdW}, 2"); a(f"s_add_u32 s{sT1}, s{sT1}, s{sWsrc}")
        a(f"buffer_load_dwordx4 v{vWo}, s[{sW_}:{sW_+3}], s{sT1} offen lds")
        a(f"s_lshl_b32 s{sT0}, s{sW}, 9"); a(f"s_add_u32 s{sT0}, s{sT0}, {slot*SLOT + 32768}")
        a(f"s_mov_b32 m0, s{sT0}")
        a(f"s_mov_b32 exec_hi, 0")
        a(f"buffer_load_dwordx4 v{vEo}, s[{sE}:{sE+3}], s{sEsrc} offen lds")
        a(f"s_mov_b32 exec_hi, -1")
        a(f"s_add_u32 s{sXsrc}, s{sXsrc}, 128")
        a(f"s_lshl_b32 s{sT1}, s{sLdW}, 6"); a(f"s_add_u32 s{sWsrc}, s{sWsrc}, s{sT1}")
        a(f"s_add_u32 s{sEsrc}, s{sEsrc}, 2048")
    for i in range(4): dma_chunk(i)
    for b in vAcc:
        for i in range(16): a(f"v_mov_b32 v{b+i}, 0")
    for i in range(4): a(f"v_mov_b32 v{vEAcc+i}, 0")
    def reads(i, s, buf):
        slot = i % 4
        xa = (vXa if slot < 2 else vXb)[s]; wa = vWa if slot < 2 else vWb
        o = (slot % 2) * SLOT
        a(f"ds_read_b128 {vr(vXf[buf][0],4)}, v{xa} offset:{o}")
        a(f"ds_read_b128 {vr(vXf[buf][1],4)}, v{xa} offset:{o+4096}")
        a(f"ds_read_b64_tr_b16 {vr(vWf[buf],2)}, v{wa} offset:{o + 4*s*1024}")
        a(f"ds_read_b64_tr_b16 {vr(vWf[buf]+2,2)}, v{wa} offset:{o + 4*s*1024 + 1024}")
    def extras(i, kind):
        slot = i % 4
        for s2 in range(2):
            a(f"v_add_u32 v{vT}, {slot*SLOT}, v{vEx}")
            if s2: a(f"v_xor_b32 v{vT}, 64, v{vT}")
            a(f"ds_read_b128 {vr(vEXf,4)}, v{vT}")
            if kind < 2:
                a(f"v_add_u32 v{vT+1}, {slot*SLOT + s2*1024}, v{vEw}")
                a(f"ds_read_b64_tr_b16 {vr(vEWf,2)}, v{vT+1}")
                a(f"ds_read_b64_tr_b16 {vr(vEWf+2,2)}, v{vT+1} offset:128")
            a("s_waitcnt lgkmcnt(0)")
            if kind == 0: a(f"v_mfma_f32_16x16x32_bf16 {vr(vEAcc,4)}, {vr(vEWf,4)}, {vr(vEXf,4)}, {vr(vEAcc,4)}")
            if kind == 1: a(f"v_mfma_f32_16x16x32_bf16 {vr(vEAcc,4)}, {vr(vEXf,4)}, {vr(vEWf,4)}, {vr(vEAcc,4)}")
            if kind == 2:
                g = vGW + 4 * (2*i + s2)
                a(f"v_mfma_f32_16x16x32_bf16 {vr(vEAcc,4)}, {vr(g,4)}, {vr(vEXf,4)}, {vr(vEAcc,4)}")
    WAITS = [15, 10, 10, 10, 10, 10, 5, 0]
    def mainloop(vtype, lbl):
        for i in range(8):
            a(f"s_waitcnt vmcnt({WAITS[i]})")
            a("s_barrier")
            if 1 <= i <= 4: dma_chunk(i + 3)
            reads(i, 0, 0)
            a(f"s_cmp_eq_u32 s{sExtra}, 0"); a(f"s_cbranch_scc1 {lbl}_x{i}")
            a(f"s_cmp_gt_u32 s{sW}, 2"); a(f"s_cbranch_scc1 {lbl}_x{i}")
            a(f"s_cmp_eq_u32 s{sW}, 1"); a(f"s_cbranch_scc1 {lbl}_x{i}v")
            a(f"s_cmp_eq_u32 s{sW}, 2"); a(f"s_cbranch_scc1 {lbl}_x{i}g")
            extras(i, 0); a(f"s_branch {lbl}_x{i}")
            a.label(f"{lbl}_x{i}v"); extras(i, 1); a(f"s_branch {lbl}_x{i}")
            a.label(f"{lbl}_x{i}g"); extras(i, 2)
            a.label(f"{lbl}_x{i}")
            for s in range(4):
                buf = s % 2
                if s < 3:
                    reads(i, s + 1, 1 - buf)
                    a("s_waitcnt lgkmcnt(4)")
                else:
                    a("s_waitcnt lgkmcnt(0)")
                for sub in range(2):
                    if vtype: a(f"v_mfma_f32_32x32x16_bf16 {vr(vAcc[sub],16)}, {vr(vXf[buf][sub],4)}, {vr(vWf[buf],4)}, {vr(vAcc[sub],16)}")
                    else: a(f"v_mfma_f32_32x32x16_bf16 {vr(vAcc[sub],16)}, {vr(vWf[buf],4)}, {vr(vXf[buf][sub],4)}, {vr(vAcc[sub],16)}")
    a(f"s_cmp_eq_u32 s{sTyp}, 2")
    a(f"s_cbranch_scc1 {pfx}_vt")
    mainloop(False, f"{pfx}_q")
    a.c("---- epilogue Q/K")
    a("s_nop 7"); a("s_nop 7")
    a(f"s_and_b32 s{sT0}, s{sC}, 3"); a(f"s_lshl_b32 s{sT0}, s{sT0}, 3"); a(f"s_lshr_b32 s{sT1}, s{sW}, 1"); a(f"s_lshl_b32 s{sT1}, s{sT1}, 1"); a(f"s_add_u32 s{sT0}, s{sT0}, s{sT1}")
    a(f"s_cmp_eq_u32 s{sTyp}, 3"); a(f"s_cselect_b32 s{sT1}, 32, 0"); a(f"s_add_u32 s{sT0}, s{sT0}, s{sT1}")
    a(f"s_lshl_b32 s{sT0}, s{sT0}, 16")
    a(f"s_lshl_b32 s{sT1}, s{sR}, 2"); a(f"s_and_b32 s{sT2}, s{sW}, 1"); a(f"s_lshl_b32 s{sT2}, s{sT2}, 1"); a(f"s_add_u32 s{sT1}, s{sT1}, s{sT2}"); a(f"s_lshl_b32 s{sT1}, s{sT1}, 10")
    a(f"s_add_u32 s{sT0}, s{sT0}, s{sT1}")
    a(f"v_and_b32 v{vT}, 31, v{vLane}")
    a(f"v_and_b32 v{vT+1}, 0x13, v{vT}")
    a(f"v_bfe_u32 v{vT+2}, v{vT}, 2, 1"); a(f"v_lshl_or_b32 v{vT+1}, v{vT+2}, 3, v{vT+1}")
    a(f"v_bfe_u32 v{vT+2}, v{vT}, 3, 1"); a(f"v_lshl_or_b32 v{vT+1}, v{vT+2}, 2, v{vT+1}")
    a(f"s_cmp_eq_u32 s{sTyp}, 1")
    a(f"s_cselect_b64 vcc, -1, 0")
    a(f"v_cndmask_b32 v{vT}, v{vT}, v{vT+1}, vcc")
    a(f"v_lshrrev_b32 v{vT+1}, 5, v{vLane}"); a(f"v_lshlrev_b32 v{vT+1}, 9, v{vT+1}")
    a(f"v_lshl_add_u32 v{vT}, v{vT}, 4, v{vT+1}")
    a(f"s_mov_b32 s{sT2}, {WS_Q}"); a(f"s_cselect_b32 s{sT2}, {WS_K}, s{sT2}"); a(f"s_add_u32 s{sT0}, s{sT0}, s{sT2}")
    a(f"s_cmp_eq_u32 s{sTyp}, 1")
    a(f"s_mov_b32 s{sT2}, {fhex(QSCALE)}"); a(f"s_cselect_b32 s{sT2}, 1.0, s{sT2}")
    for sub in range(2):
        for i in range(16): a(f"v_mul_f32 v{vAcc[sub]+i}, s{sT2}, v{vAcc[sub]+i}")
        for hd in range(2):
            d = vXf[0][0] + 4 * (2*sub + hd)
            for i in range(4): a(f"v_cvt_pk_bf16_f32 v{d+i}, v{vAcc[sub]+8*hd+2*i}, v{vAcc[sub]+8*hd+2*i+1}")
            a(f"s_add_u32 s{sT1}, s{sT0}, {sub*1024 + hd*65536}")
            a(f"buffer_store_dwordx4 {vr(d,4)}, v{vT}, s[{sWS}:{sWS+3}], s{sT1} offen")
    a(f"s_branch {pfx}_epi_x")
    a.label(f"{pfx}_vt")
    mainloop(True, f"{pfx}_v")
    a.c("---- epilogue V")
    a("s_nop 7"); a("s_nop 7")
    a(f"s_and_b32 s{sT0}, s{sC}, 3"); a(f"s_lshl_b32 s{sT0}, s{sT0}, 3"); a(f"s_lshr_b32 s{sT1}, s{sW}, 1"); a(f"s_lshl_b32 s{sT1}, s{sT1}, 1"); a(f"s_add_u32 s{sT0}, s{sT0}, s{sT1}")
    a(f"s_lshl_b32 s{sT0}, s{sT0}, 16")
    a(f"s_lshl_b32 s{sT1}, s{sR}, 2"); a(f"s_and_b32 s{sT2}, s{sW}, 1"); a(f"s_lshl_b32 s{sT2}, s{sT2}, 1"); a(f"s_add_u32 s{sT1}, s{sT1}, s{sT2}"); a(f"s_lshl_b32 s{sT1}, s{sT1}, 10")
    a(f"s_add_u32 s{sT0}, s{sT0}, s{sT1}"); a(f"s_add_u32 s{sT0}, s{sT0}, {WS_V}")
    a(f"v_bfe_u32 v{vT}, v{vLane}, 4, 1"); a(f"v_lshlrev_b32 v{vT}, 16, v{vT}")
    a(f"v_lshrrev_b32 v{vT+1}, 5, v{vLane}"); a(f"v_lshl_add_u32 v{vT}, v{vT+1}, 8, v{vT}")
    a(f"v_and_b32 v{vT+1}, 15, v{vLane}"); a(f"v_lshl_add_u32 v{vT}, v{vT+1}, 4, v{vT}")
    for sub in range(2):
        for g in range(2):
            d = vXf[0][0] + 4 * (2*sub + g)
            for i in range(4): a(f"v_cvt_pk_bf16_f32 v{d+i}, v{vAcc[sub]+8*g+2*i}, v{vAcc[sub]+8*g+2*i+1}")
            a(f"s_add_u32 s{sT1}, s{sT0}, {sub*1024 + g*512}")
            a(f"buffer_store_dwordx4 {vr(d,4)}, v{vT}, s[{sWS}:{sWS+3}], s{sT1} offen")
    a.label(f"{pfx}_epi_x")
    a.c("---- epilogue extras")
    a(f"s_cmp_eq_u32 s{sExtra}, 0"); a(f"s_cbranch_scc1 {pfx}_end")
    a(f"s_cmp_gt_u32 s{sW}, 2"); a(f"s_cbranch_scc1 {pfx}_end")
    a(f"s_lshl_b32 s{sT0}, s{sR}, 2"); a(f"s_lshr_b32 s{sT1}, s{sC}, 1"); a(f"s_add_u32 s{sT0}, s{sT0}, s{sT1}")
    a(f"s_and_b32 s{sT2}, s{sC}, 1")
    a(f"v_and_b32 v{vT}, 15, v{vLane}")
    a(f"v_lshrrev_b32 v{vT+1}, 4, v{vLane}")
    a(f"s_cmp_eq_u32 s{sW}, 2"); a(f"s_cbranch_scc1 {pfx}_eg")
    a(f"v_cvt_pk_bf16_f32 v{vEXf}, v{vEAcc}, v{vEAcc+1}")
    a(f"v_cvt_pk_bf16_f32 v{vEXf+1}, v{vEAcc+2}, v{vEAcc+3}")
    a(f"v_and_b32 v{vT+2}, 1, v{vT+1}")
    a(f"v_lshrrev_b32 v{vT+1}, 1, v{vT+1}")
    a(f"s_lshl_b32 s{sT0}, s{sT0}, 10")
    a(f"s_cmp_eq_u32 s{sW}, 1"); a(f"s_cbranch_scc1 {pfx}_ev")
    a(f"v_and_b32 v{vT+3}, 3, v{vT}")
    a(f"v_bfe_u32 v{vEx}, v{vT}, 2, 1"); a(f"v_lshl_or_b32 v{vT+3}, v{vEx}, 3, v{vT+3}")
    a(f"v_bfe_u32 v{vEx}, v{vT}, 3, 1"); a(f"v_lshl_or_b32 v{vT+3}, v{vEx}, 2, v{vT+3}")
    a(f"s_lshl_b32 s{sT2}, s{sT2}, 8")
    a(f"v_lshlrev_b32 v{vT+3}, 4, v{vT+3}")
    a(f"v_lshl_add_u32 v{vT+3}, v{vT+2}, 9, v{vT+3}")
    a(f"v_lshl_add_u32 v{vT+3}, v{vT+1}, 3, v{vT+3}")
    a(f"s_add_u32 s{sT0}, s{sT0}, s{sT2}"); a(f"s_add_u32 s{sT0}, s{sT0}, {WS_K + 32*65536}")
    a(f"buffer_store_dwordx2 {vr(vEXf,2)}, v{vT+3}, s[{sWS}:{sWS+3}], s{sT0} offen")
    a(f"s_branch {pfx}_end")
    a.label(f"{pfx}_ev")
    a(f"s_lshl_b32 s{sT2}, s{sT2}, 9")
    a(f"v_lshlrev_b32 v{vT+3}, 4, v{vT}")
    a(f"v_lshl_add_u32 v{vT+3}, v{vT+2}, 8, v{vT+3}")
    a(f"v_lshl_add_u32 v{vT+3}, v{vT+1}, 3, v{vT+3}")
    a(f"s_add_u32 s{sT0}, s{sT0}, s{sT2}"); a(f"s_add_u32 s{sT0}, s{sT0}, {WS_V + 32*65536}")
    a(f"buffer_store_dwordx2 {vr(vEXf,2)}, v{vT+3}, s[{sWS}:{sWS+3}], s{sT0} offen")
    a(f"s_branch {pfx}_end")
    a.label(f"{pfx}_eg")
    a(f"v_mul_f32 v{vEAcc}, {fhex(-1.4426950408889634)}, v{vEAcc}")
    a(f"v_exp_f32 v{vEAcc}, v{vEAcc}")
    a(f"s_lshl_b32 s{sT0}, s{sT0}, 7"); a(f"s_lshl_b32 s{sT2}, s{sT2}, 6"); a(f"s_add_u32 s{sT0}, s{sT0}, s{sT2}"); a(f"s_add_u32 s{sT0}, s{sT0}, {WS_G}")
    a(f"v_add_f32 v{vEAcc}, 1.0, v{vEAcc}")
    a(f"v_rcp_f32 v{vEAcc}, v{vEAcc}")
    a(f"v_lshlrev_b32 v{vT}, 2, v{vT}")
    a(f"v_cmp_eq_u32 vcc, 0, v{vT+1}")
    a(f"s_and_saveexec_b64 s[48:49], vcc")
    a(f"buffer_store_dword v{vEAcc}, v{vT}, s[{sWS}:{sWS+3}], s{sT0} offen")
    a(f"s_mov_b64 exec, s[48:49]")
    a.label(f"{pfx}_end")
    return nv

def build():
    a = Asm(); name = "proj_kernel"
    a("s_cmp_ge_u32 s2, 256"); a("s_cbranch_scc1 PJ_exit")
    nv = emit_proj(a)
    a.label("PJ_exit"); a("s_endpgm")
    hdr = f"; @launch kernel={name} grid=(256,1,1) block=(512,1,1) lds={LDS_PROJ}\n.amdgcn_target \"amdgcn-amd-amdhsa--gfx950\"\n"
    return hdr + kernel_head(name) + a.text() + kernel_desc(name, nv, 64)
if __name__ == "__main__":
    open("proj.s", "w").write(build())
```

```python
import sys
from asmlib import *
import gen_attn as GA, gen_proj as GP, gen_out as GO
NAME = "gated_mix__softmax_full_mha__grouped_kv_mqa__prompt"
def header():
    ref = open(f"cdna_kernels/{NAME}.s.ref").read().split("\n")
    out = []
    for l in ref:
        if l.startswith("; Override") or l.startswith("; grid=") or l.startswith("; @launch") or not l.startswith(";"): break
        out.append(l)
    return "\n".join(out) + "\n"
def build3(attn_kw=None, stamp=False):
    attn_kw = attn_kw or dict(NQ=2, NW=8, U=8, zrows=True, bias=96.0, sched=(2, 7, 10))
    NW = attn_kw["NW"]
    h = header()
    h += f"; @launch kernel=proj_kernel grid=(256,1,1) block=(512,1,1) lds={GP.LDS_PROJ}\n"
    h += f"; @launch kernel=attn_kernel grid=(256,1,1) block=({NW*64},1,1) lds={GA.LDS_ATTN}\n"
    h += f"; @launch kernel=out_kernel grid=(256,1,1) block=(512,1,1) lds={GO.LDS_OUT}\n"
    h += '.amdgcn_target "amdgcn-amd-amdhsa--gfx950"\n'
    body = ""; desc = ""
    a = Asm(); a("s_cmp_ge_u32 s2, 256"); a("s_cbranch_scc1 PJ_exit"); nv = GP.emit_proj(a); a.label("PJ_exit"); a("s_endpgm")
    body += kernel_head("proj_kernel") + a.text(); desc += kernel_desc("proj_kernel", nv, 64)
    a = Asm(); a("s_cmp_ge_u32 s2, 256"); a("s_cbranch_scc1 AT_exit")
    kw = dict(attn_kw); NQ = kw.pop("NQ"); kw.pop("NW"); U = kw.pop("U")
    nv = GA.emit_attn(a, NQ, NW, U, stamp=stamp, **kw); a.label("AT_exit"); a("s_endpgm")
    body += kernel_head("attn_kernel") + a.text(); desc += kernel_desc("attn_kernel", nv, 72)
    a = Asm(); a("s_cmp_ge_u32 s2, 256"); a("s_cbranch_scc1 OP_exit"); nv = GO.emit_out(a); a.label("OP_exit"); a("s_endpgm")
    body += kernel_head("out_kernel") + a.text(); desc += kernel_desc("out_kernel", nv, 64)
    return h + body + desc
if __name__ == "__main__":
    s = build3()
    open("full3.s", "w").write(s)
    if len(sys.argv) > 1 and sys.argv[1] == "install":
        open(f"cdna_kernels/{NAME}.s", "w").write(s)
    print(len(s), "bytes")
```

```python
import struct, sys
from asmlib import *
NAME = "gated_mix__softmax_full_mha__grouped_kv_mqa__prompt"
def fhex(x): return "0x%08x" % struct.unpack("<I", struct.pack("<f", x))[0]
WS_Q, WS_K, WS_V, WS_G, WS_O = 0x000000, 0x400000, 0x620000, 0x840000, 0x900000
WS_F1, WS_F2, WS_TOK = 0xD00000, 0xD01000, 0xD02000
WS_DBG = 0xE00000
WS_USED = 0x1000000
TOKC = 0x9E3779B9
SPIN = 1 << 17
PSLOT = 34816
LDS_K, LDS_V, VSTRIDE = 0, 65536, 1040
LDS_TOTAL = 4 * PSLOT
QSCALE = 0.25 * 1.4426950408889634
C_KB, C_VB, C_G = 0, 4, 8
sW, sWS, sTok = 3, 8, 12
SC1 = " sc1"

class Gen:
    def __init__(self, stamp=False, bias=96.0, sched=(2, 5, 10), U=8, psw=7, sc1=True):
        self.a = Asm(); self.stamp = stamp; self.bias = bias; self.sched = sched; self.U = U; self.psw = psw
        self.sc = SC1 if sc1 else ""
        self.nst = 0; self.stnames = []
    def st(self, name):
        if not self.stamp: return
        a = self.a; i = self.nst; self.nst += 1; self.stnames.append(name)
        a("s_memtime s[96:97]"); a("s_memrealtime s[98:99]"); a("s_waitcnt lgkmcnt(0)")
        a(f"v_writelane_b32 v254, s96, {i}"); a(f"v_writelane_b32 v255, s98, {i}")
    def st_at(self, name, i):
        a = self.a
        a("s_memtime s[96:97]"); a("s_memrealtime s[98:99]"); a("s_waitcnt lgkmcnt(0)")
        a(f"v_writelane_b32 v254, s96, {i}"); a(f"v_writelane_b32 v255, s98, {i}")
    def st_dump(self):
        if not self.stamp: return
        a = self.a
        a("s_waitcnt vmcnt(0)")
        a(f"s_lshl_b32 s96, s2, 3"); a(f"s_add_u32 s96, s96, s{sW}"); a("s_lshl_b32 s96, s96, 9"); a(f"s_add_u32 s96, s96, {WS_DBG}")
        a("v_mbcnt_lo_u32_b32 v253, -1, 0"); a("v_mbcnt_hi_u32_b32 v253, -1, v253"); a("v_lshlrev_b32 v253, 2, v253")
        a(f"buffer_store_dword v254, v253, s[{sWS}:{sWS+3}], s96 offen")
        a(f"buffer_store_dword v255, v253, s[{sWS}:{sWS+3}], s96 offen offset:256")
    def poll(self, lbl, vaddr, n, vtmp, mask_lanes=None):
        a = self.a
        a(f"s_mov_b32 s14, {SPIN}")
        a.label(lbl)
        if n == 1: a(f"buffer_load_dword v{vtmp}, v{vaddr}, s[{sWS}:{sWS+3}], 0 offen sc1")
        else: a(f"buffer_load_dwordx2 v[{vtmp}:{vtmp+1}], v{vaddr}, s[{sWS}:{sWS+3}], 0 offen sc1")
        a("s_waitcnt vmcnt(0)")
        a(f"v_cmp_eq_u32 vcc, s{sTok}, v{vtmp}")
        if n == 2:
            a(f"v_cmp_eq_u32 s[16:17], s{sTok}, v{vtmp+1}")
            a("s_nop 1"); a("s_and_b64 vcc, vcc, s[16:17]")
        a("s_nop 1")
        a("s_cmp_eq_u64 vcc, -1"); a(f"s_cbranch_scc1 {lbl}_ok")
        a("s_sleep 2")
        a("s_sub_u32 s14, s14, 1"); a("s_cmp_lg_u32 s14, 0"); a(f"s_cbranch_scc1 {lbl}")
        a.label(f"{lbl}_ok")

    def proj(self):
        a = self.a; pfx = "PJ"
        sX, sW_, sE = 16, 20, 24
        sR, sC, sTyp, sLdW, sT0, sT1, sT2 = 28, 29, 30, 31, 32, 33, 34
        sXsrc, sWsrc, sEsrc, sLds, sKind = 35, 36, 37, 38, 39
        vLane, vXo0, vXo1, vWo, vEo = 1, 2, 3, 4, 5
        vXa = [6, 7, 8, 9]; vXb = [10, 11, 12, 13]; vWa, vWb = 14, 15
        vT = 16; vEx, vEw, vTok = 20, 21, 22
        vXf = [[24, 28], [32, 36]]; vWf = [40, 44]; vAcc = [48, 64]
        vEAcc = 80; vEXf = [84, 88]; vEWf = [92, 96]; vGW = 100
        self.p = dict(sR=sR, sC=sC)
        a.c("================ phase 1: projections")
        a("s_load_dwordx4 s[4:7], s[0:1], 0")
        a("s_load_dwordx2 s[40:41], s[0:1], 32")
        a("s_load_dwordx4 s[44:47], s[0:1], 40")
        a("s_load_dwordx2 s[48:49], s[0:1], 64")
        a("s_load_dwordx2 s[50:51], s[0:1], 88")
        a(f"v_lshrrev_b32 v{vT}, 6, v0")
        a(f"v_and_b32 v{vLane}, 63, v0")
        a(f"v_readfirstlane_b32 s{sW}, v{vT}")
        a(f"s_and_b32 s{sT0}, s2, 7"); a(f"s_lshr_b32 s{sT1}, s2, 3")
        a(f"s_and_b32 s{sR}, s{sT0}, 1"); a(f"s_lshl_b32 s{sR}, s{sR}, 3"); a(f"s_and_b32 s{sT2}, s{sT1}, 7"); a(f"s_add_u32 s{sR}, s{sR}, s{sT2}")
        a(f"s_lshr_b32 s{sC}, s{sT0}, 1"); a(f"s_lshl_b32 s{sC}, s{sC}, 2"); a(f"s_lshr_b32 s{sT2}, s{sT1}, 3"); a(f"s_add_u32 s{sC}, s{sC}, s{sT2}")
        a(f"s_lshr_b32 s{sTyp}, s{sC}, 2")
        a(f"s_mov_b32 s{sKind}, 0")
        for k, c in ((1, C_KB), (2, C_VB), (3, C_G)):
            a(f"s_cmp_eq_u32 s{sC}, {c}"); a(f"s_cselect_b32 s{sKind}, {k}, s{sKind}")
        a(f"s_cmp_eq_u32 s{sTyp}, 3"); a(f"s_mov_b32 s{sLdW}, 3072"); a(f"s_cselect_b32 s{sLdW}, 1024, s{sLdW}")
        a(f"v_lshrrev_b32 v{vT}, 3, v{vLane}"); a(f"v_lshrrev_b32 v{vT+1}, 4, v{vLane}"); a(f"v_and_b32 v{vT+2}, 7, v{vLane}")
        a(f"v_xor_b32 v{vT+3}, v{vT+2}, v{vT+1}"); a(f"v_lshlrev_b32 v{vT+3}, 4, v{vT+3}")
        a(f"v_lshl_add_u32 v{vXo0}, v{vT}, 10, v{vT+3}")
        a(f"v_xor_b32 v{vXo1}, 64, v{vXo0}"); a(f"v_add_u32 v{vXo1}, 8192, v{vXo1}")
        a(f"v_lshlrev_b32 v{vT}, 6, v{vT+1}")
        a(f"v_and_b32 v{vT+1}, 3, v{vLane}"); a(f"v_lshl_add_u32 v{vT}, v{vT+1}, 4, v{vT}")
        a(f"v_bfe_u32 v{vT+1}, v{vLane}, 2, 2"); a(f"v_mul_lo_u32 v{vT+1}, v{vT+1}, s{sLdW}"); a(f"v_add_u32 v{vWo}, v{vT}, v{vT+1}")
        a(f"v_lshlrev_b32 v{vEo}, 4, v{vLane}")
        a(f"v_mov_b32 v{vT}, {WS_TOK}")
        a(f"s_lshl_b32 s{sXsrc}, s{sR}, 17"); a(f"s_lshl_b32 s{sT0}, s{sW}, 14"); a(f"s_add_u32 s{sXsrc}, s{sXsrc}, s{sT0}")
        a(f"s_mul_i32 s{sWsrc}, s{sW}, s{sLdW}"); a(f"s_lshl_b32 s{sWsrc}, s{sWsrc}, 3")
        a(f"s_cmp_eq_u32 s{sTyp}, 3"); a(f"s_cselect_b32 s{sT0}, 12, 0"); a(f"s_sub_u32 s{sT0}, s{sC}, s{sT0}"); a(f"s_lshl_b32 s{sT0}, s{sT0}, 8")
        a(f"s_add_u32 s{sWsrc}, s{sWsrc}, s{sT0}")
        a(f"s_lshl_b32 s{sEsrc}, s{sW}, 8")
        a("s_waitcnt lgkmcnt(0)")
        srd(a, sWS, 50, WS_USED)
        srd(a, sX, 4, 2048*1024)
        a(f"s_cmp_eq_u32 s{sTyp}, 3")
        a(f"s_cselect_b32 s{sW_}, s40, s6"); a(f"s_cselect_b32 s{sW_+1}, s41, s7"); a(f"s_and_b32 s{sW_+1}, s{sW_+1}, 0xffff")
        a(f"s_lshl_b32 s{sW_+2}, s{sLdW}, 9"); a(f"s_mov_b32 s{sW_+3}, 0x00020000")
        a(f"s_cmp_eq_u32 s{sKind}, 2")
        a(f"s_cselect_b32 s{sE}, s46, s44"); a(f"s_cselect_b32 s{sE+1}, s47, s45"); a(f"s_and_b32 s{sE+1}, s{sE+1}, 0xffff")
        a(f"s_mov_b32 s{sE+2}, 0")
        a(f"s_cmp_eq_u32 s{sKind}, 2"); a(f"s_cselect_b32 s{sE+2}, 16384, s{sE+2}")
        a(f"s_cmp_eq_u32 s{sKind}, 1"); a(f"s_cselect_b32 s{sE+2}, 16384, s{sE+2}")
        a(f"s_mov_b32 s{sE+3}, 0x00020000")
        a(f"buffer_load_dword v{vTok}, v{vT}, s[{sWS}:{sWS+3}], 0 offen sc1")
        a(f"s_cmp_eq_u32 s{sKind}, 3"); a(f"s_cbranch_scc0 {pfx}_nogw")
        srd(a, 52, 48, 1024)
        a(f"v_lshrrev_b32 v{vT}, 4, v{vLane}"); a(f"v_lshlrev_b32 v{vT}, 4, v{vT}")
        for s in range(16): a(f"buffer_load_dwordx4 {vr(vGW+4*s,4)}, v{vT}, s[52:55], 0 offen offset:{64*s}")
        a.label(f"{pfx}_nogw")
        def dma_piece(i, k):
            slot = i % 4
            if k == 0:
                a(f"s_lshl_b32 s{sLds}, s{sW}, 11"); a(f"s_add_u32 s{sLds}, s{sLds}, {slot*PSLOT}")
                a(f"s_mov_b32 m0, s{sLds}"); a(f"s_add_u32 s{sLds}, s{sLds}, 1024")
                a(f"buffer_load_dwordx4 v{vXo0}, s[{sX}:{sX+3}], s{sXsrc} offen lds")
            if k == 1:
                a(f"s_mov_b32 m0, s{sLds}"); a(f"s_add_u32 s{sLds}, s{sLds}, {16384-1024}")
                a(f"buffer_load_dwordx4 v{vXo1}, s[{sX}:{sX+3}], s{sXsrc} offen lds")
                a(f"s_add_u32 s{sXsrc}, s{sXsrc}, 128")
            if k == 2:
                a(f"s_mov_b32 m0, s{sLds}"); a(f"s_add_u32 s{sLds}, s{sLds}, 1024")
                a(f"buffer_load_dwordx4 v{vWo}, s[{sW_}:{sW_+3}], s{sWsrc} offen lds")
            if k == 3:
                a(f"s_mov_b32 m0, s{sLds}")
                a(f"s_lshl_b32 s{sT1}, s{sLdW}, 2"); a(f"s_add_u32 s{sT1}, s{sT1}, s{sWsrc}")
                a(f"buffer_load_dwordx4 v{vWo}, s[{sW_}:{sW_+3}], s{sT1} offen lds")
                a(f"s_lshl_b32 s{sT1}, s{sLdW}, 6"); a(f"s_add_u32 s{sWsrc}, s{sWsrc}, s{sT1}")
            if k == 4:
                a(f"s_lshl_b32 s{sT0}, s{sW}, 8"); a(f"s_add_u32 s{sT0}, s{sT0}, {slot*PSLOT + 32768}")
                a(f"s_mov_b32 m0, s{sT0}")
                a(f"s_mov_b64 exec, 0xffff")
                a(f"buffer_load_dwordx4 v{vEo}, s[{sE}:{sE+3}], s{sEsrc} offen lds")
                a(f"s_mov_b64 exec, -1")
                a(f"s_add_u32 s{sEsrc}, s{sEsrc}, 2048")
        for i in range(2):
            for k in range(5): dma_piece(i, k)
        self.st("p_dma")
        a(f"v_and_b32 v{vT}, 31, v{vLane}"); a(f"v_lshrrev_b32 v{vT+1}, 5, v{vLane}"); a(f"v_bfe_u32 v{vT+2}, v{vLane}, 1, 3")
        a(f"s_and_b32 s{sT0}, s{sW}, 1"); a(f"s_lshl_b32 s{sT0}, s{sT0}, 13")
        a(f"v_lshlrev_b32 v{vT}, 7, v{vT}"); a(f"v_add_u32 v{vT}, s{sT0}, v{vT}")
        for s in range(4):
            a(f"v_add_u32 v{vT+3}, {2*s}, v{vT+1}"); a(f"v_xor_b32 v{vT+3}, v{vT+3}, v{vT+2}")
            a(f"v_lshl_add_u32 v{vXa[s]}, v{vT+3}, 4, v{vT}"); a(f"v_add_u32 v{vXb[s]}, {2*PSLOT}, v{vXa[s]}")
        a(f"v_lshlrev_b32 v{vT+1}, 11, v{vT+1}")
        a(f"v_bfe_u32 v{vT+2}, v{vLane}, 2, 2"); a(f"v_lshl_add_u32 v{vT+1}, v{vT+2}, 6, v{vT+1}")
        a(f"v_bfe_u32 v{vT+2}, v{vLane}, 4, 1"); a(f"v_lshl_add_u32 v{vT+1}, v{vT+2}, 5, v{vT+1}")
        a(f"v_and_b32 v{vT+2}, 3, v{vLane}"); a(f"v_lshl_add_u32 v{vT+1}, v{vT+2}, 3, v{vT+1}")
        a(f"s_lshr_b32 s{sT0}, s{sW}, 1"); a(f"s_lshl_b32 s{sT0}, s{sT0}, 8"); a(f"s_add_u32 s{sT0}, s{sT0}, 16384")
        a(f"v_add_u32 v{vWa}, s{sT0}, v{vT+1}"); a(f"v_add_u32 v{vWb}, {2*PSLOT}, v{vWa}")
        a(f"v_and_b32 v{vT}, 15, v{vLane}"); a(f"v_lshrrev_b32 v{vT+1}, 4, v{vLane}"); a(f"v_bfe_u32 v{vT+2}, v{vLane}, 1, 3")
        a(f"v_xor_b32 v{vT+2}, v{vT+2}, v{vT+1}"); a(f"v_lshlrev_b32 v{vT+2}, 4, v{vT+2}")
        a(f"v_lshl_add_u32 v{vEx}, v{vT}, 7, v{vT+2}")
        a(f"s_lshl_b32 s{sT0}, s{sW}, 11"); a(f"v_add_u32 v{vEx}, s{sT0}, v{vEx}")
        a(f"v_bfe_u32 v{vT}, v{vLane}, 2, 2"); a(f"v_lshl_add_u32 v{vT}, v{vT+1}, 3, v{vT}"); a(f"v_lshlrev_b32 v{vT}, 5, v{vT}")
        a(f"v_and_b32 v{vT+2}, 3, v{vLane}"); a(f"v_lshl_add_u32 v{vEw}, v{vT+2}, 3, v{vT}"); a(f"v_add_u32 v{vEw}, 32768, v{vEw}")
        for b in vAcc:
            for i in range(16): a(f"v_mov_b32 v{b+i}, 0")
        for i in range(4): a(f"v_mov_b32 v{vEAcc+i}, 0")
        def reads(i, s, buf):
            slot = i % 4
            xa = (vXa if slot < 2 else vXb)[s]; wa = vWa if slot < 2 else vWb
            o = (slot % 2) * PSLOT
            a(f"ds_read_b128 {vr(vXf[buf][0],4)}, v{xa} offset:{o}")
            a(f"ds_read_b128 {vr(vXf[buf][1],4)}, v{xa} offset:{o+4096}")
            a(f"ds_read_b64_tr_b16 {vr(vWf[buf],2)}, v{wa} offset:{o + 4*s*1024}")
            a(f"ds_read_b64_tr_b16 {vr(vWf[buf]+2,2)}, v{wa} offset:{o + 4*s*1024 + 1024}")
        def ex_reads(i, kind):
            slot = i % 4
            for s2 in range(2):
                a(f"v_add_u32 v{vT}, {slot*PSLOT}, v{vEx}")
                if s2: a(f"v_xor_b32 v{vT}, 64, v{vT}")
                a(f"ds_read_b128 {vr(vEXf[s2],4)}, v{vT}")
                if kind < 3:
                    a(f"v_add_u32 v{vT+1}, {slot*PSLOT + s2*1024}, v{vEw}")
                    a(f"ds_read_b64_tr_b16 {vr(vEWf[s2],2)}, v{vT+1}")
                    a(f"ds_read_b64_tr_b16 {vr(vEWf[s2]+2,2)}, v{vT+1} offset:128")
        def ex_mfma(i, kind):
            for s2 in range(2):
                if kind == 1: a(f"v_mfma_f32_16x16x32_bf16 {vr(vEAcc,4)}, {vr(vEWf[s2],4)}, {vr(vEXf[s2],4)}, {vr(vEAcc,4)}")
                if kind == 2: a(f"v_mfma_f32_16x16x32_bf16 {vr(vEAcc,4)}, {vr(vEXf[s2],4)}, {vr(vEWf[s2],4)}, {vr(vEAcc,4)}")
                if kind == 3: a(f"v_mfma_f32_16x16x32_bf16 {vr(vEAcc,4)}, {vr(vGW + 4*(2*i + s2),4)}, {vr(vEXf[s2],4)}, {vr(vEAcc,4)}")
        def mainloop(vtype, kind, lbl):
            for i in range(8):
                a(f"s_waitcnt vmcnt({0 if i == 7 else 5})")
                a("s_barrier")
                if self.stamp == "proj": self.st_at(f"pb{i}", 20 + i)
                if kind: ex_reads(i, kind)
                reads(i, 0, 0)
                for s in range(4):
                    buf = s % 2
                    if s < 3:
                        reads(i, s + 1, 1 - buf); a("s_waitcnt lgkmcnt(4)")
                    else:
                        a("s_waitcnt lgkmcnt(0)")
                    for sub in range(2):
                        if vtype: a(f"v_mfma_f32_32x32x16_bf16 {vr(vAcc[sub],16)}, {vr(vXf[buf][sub],4)}, {vr(vWf[buf],4)}, {vr(vAcc[sub],16)}")
                        else: a(f"v_mfma_f32_32x32x16_bf16 {vr(vAcc[sub],16)}, {vr(vWf[buf],4)}, {vr(vXf[buf][sub],4)}, {vr(vAcc[sub],16)}")
                    if kind and s == 0: ex_mfma(i, kind)
                    if i + 2 < 8:
                        if s < 3: dma_piece(i + 2, s)
                        else: dma_piece(i + 2, 3); dma_piece(i + 2, 4)
        a(f"s_cmp_eq_u32 s{sTyp}, 2"); a(f"s_cbranch_scc1 {pfx}_vt")
        a(f"s_cmp_eq_u32 s{sKind}, 1"); a(f"s_cbranch_scc1 {pfx}_q1")
        a(f"s_cmp_eq_u32 s{sKind}, 2"); a(f"s_cbranch_scc1 {pfx}_q2")
        mainloop(False, 0, "q0"); a(f"s_branch {pfx}_qepi")
        a.label(f"{pfx}_q1"); mainloop(False, 1, "q1"); a(f"s_branch {pfx}_qepi")
        a.label(f"{pfx}_q2"); mainloop(False, 2, "q2")
        a.label(f"{pfx}_qepi")
        a.c("---- epilogue Q/K")
        def headtile():
            a(f"s_and_b32 s{sT0}, s{sC}, 3"); a(f"s_lshl_b32 s{sT0}, s{sT0}, 3"); a(f"s_lshr_b32 s{sT1}, s{sW}, 1"); a(f"s_lshl_b32 s{sT1}, s{sT1}, 1"); a(f"s_add_u32 s{sT0}, s{sT0}, s{sT1}")
        def addtile():
            a(f"s_lshl_b32 s{sT0}, s{sT0}, 16")
            a(f"s_lshl_b32 s{sT1}, s{sR}, 2"); a(f"s_and_b32 s{sT2}, s{sW}, 1"); a(f"s_lshl_b32 s{sT2}, s{sT2}, 1"); a(f"s_add_u32 s{sT1}, s{sT1}, s{sT2}"); a(f"s_lshl_b32 s{sT1}, s{sT1}, 10")
            a(f"s_add_u32 s{sT0}, s{sT0}, s{sT1}")
        headtile()
        a(f"s_cmp_eq_u32 s{sTyp}, 3"); a(f"s_cselect_b32 s{sT1}, 32, 0"); a(f"s_add_u32 s{sT0}, s{sT0}, s{sT1}")
        addtile()
        a(f"v_and_b32 v{vT}, 31, v{vLane}"); a(f"v_and_b32 v{vT+1}, 0x13, v{vT}")
        a(f"v_bfe_u32 v{vT+2}, v{vT}, 2, 1"); a(f"v_lshl_or_b32 v{vT+1}, v{vT+2}, 3, v{vT+1}")
        a(f"v_bfe_u32 v{vT+2}, v{vT}, 3, 1"); a(f"v_lshl_or_b32 v{vT+1}, v{vT+2}, 2, v{vT+1}")
        a(f"s_cmp_eq_u32 s{sTyp}, 1"); a(f"s_cselect_b64 vcc, -1, 0")
        a(f"v_cndmask_b32 v{vT}, v{vT}, v{vT+1}, vcc")
        a(f"v_lshrrev_b32 v{vT+1}, 5, v{vLane}"); a(f"v_lshlrev_b32 v{vT+1}, 9, v{vT+1}"); a(f"v_lshl_add_u32 v{vT}, v{vT}, 4, v{vT+1}")
        a(f"s_mov_b32 s{sT2}, {WS_Q}"); a(f"s_cselect_b32 s{sT2}, {WS_K}, s{sT2}")
        a(f"s_mov_b32 s{sLds}, {fhex(QSCALE)}"); a(f"s_cselect_b32 s{sLds}, 1.0, s{sLds}")
        a(f"s_add_u32 s{sT0}, s{sT0}, s{sT2}")
        for sub in range(2):
            for hd in range(2):
                for i in range(8): a(f"v_mul_f32 v{vAcc[sub]+8*hd+i}, s{sLds}, v{vAcc[sub]+8*hd+i}")
                d = vXf[0][0] + 4 * (2*sub + hd)
                for i in range(4): a(f"v_cvt_pk_bf16_f32 v{d+i}, v{vAcc[sub]+8*hd+2*i}, v{vAcc[sub]+8*hd+2*i+1}")
                a(f"s_add_u32 s{sT1}, s{sT0}, {sub*1024 + hd*65536}")
                a(f"buffer_store_dwordx4 {vr(d,4)}, v{vT}, s[{sWS}:{sWS+3}], s{sT1} offen{self.sc}")
        a(f"s_branch {pfx}_epi_x")
        a.label(f"{pfx}_vt")
        a(f"s_cmp_eq_u32 s{sKind}, 3"); a(f"s_cbranch_scc1 {pfx}_v3")
        mainloop(True, 0, "v0"); a(f"s_branch {pfx}_vepi")
        a.label(f"{pfx}_v3"); mainloop(True, 3, "v3")
        a.label(f"{pfx}_vepi")
        a.c("---- epilogue V")
        headtile(); addtile(); a(f"s_add_u32 s{sT0}, s{sT0}, {WS_V}")
        a(f"v_bfe_u32 v{vT}, v{vLane}, 4, 1"); a(f"v_lshlrev_b32 v{vT}, 16, v{vT}")
        a(f"v_lshrrev_b32 v{vT+1}, 5, v{vLane}"); a(f"v_lshl_add_u32 v{vT}, v{vT+1}, 8, v{vT}")
        a(f"v_and_b32 v{vT+1}, 15, v{vLane}"); a(f"v_lshl_add_u32 v{vT}, v{vT+1}, 4, v{vT}")
        for sub in range(2):
            for g in range(2):
                d = vXf[0][0] + 4 * (2*sub + g)
                for i in range(4): a(f"v_cvt_pk_bf16_f32 v{d+i}, v{vAcc[sub]+8*g+2*i}, v{vAcc[sub]+8*g+2*i+1}")
                a(f"s_add_u32 s{sT1}, s{sT0}, {sub*1024 + g*512}")
                a(f"buffer_store_dwordx4 {vr(d,4)}, v{vT}, s[{sWS}:{sWS+3}], s{sT1} offen{self.sc}")
        a.label(f"{pfx}_epi_x")
        a.c("---- epilogue extra chain: rows 128 r + 16 w ..  => tile = 4 r + (w>>1), half = w&1")
        a(f"s_cmp_eq_u32 s{sKind}, 0"); a(f"s_cbranch_scc1 {pfx}_end")
        a(f"s_lshl_b32 s{sT0}, s{sR}, 2"); a(f"s_lshr_b32 s{sT1}, s{sW}, 1"); a(f"s_add_u32 s{sT0}, s{sT0}, s{sT1}")
        a(f"s_and_b32 s{sT2}, s{sW}, 1")
        a(f"v_and_b32 v{vT}, 15, v{vLane}"); a(f"v_lshrrev_b32 v{vT+1}, 4, v{vLane}")
        a(f"s_cmp_eq_u32 s{sKind}, 3"); a(f"s_cbranch_scc1 {pfx}_eg")
        a(f"v_cvt_pk_bf16_f32 v{vEXf[0]}, v{vEAcc}, v{vEAcc+1}"); a(f"v_cvt_pk_bf16_f32 v{vEXf[0]+1}, v{vEAcc+2}, v{vEAcc+3}")
        a(f"v_and_b32 v{vT+2}, 1, v{vT+1}"); a(f"v_lshrrev_b32 v{vT+1}, 1, v{vT+1}")
        a(f"s_lshl_b32 s{sT0}, s{sT0}, 10")
        a(f"s_cmp_eq_u32 s{sKind}, 2"); a(f"s_cbranch_scc1 {pfx}_ev")
        a(f"v_and_b32 v{vT+3}, 3, v{vT}")
        a(f"v_bfe_u32 v{vEx}, v{vT}, 2, 1"); a(f"v_lshl_or_b32 v{vT+3}, v{vEx}, 3, v{vT+3}")
        a(f"v_bfe_u32 v{vEx}, v{vT}, 3, 1"); a(f"v_lshl_or_b32 v{vT+3}, v{vEx}, 2, v{vT+3}")
        a(f"s_lshl_b32 s{sT2}, s{sT2}, 8")
        a(f"v_lshlrev_b32 v{vT+3}, 4, v{vT+3}"); a(f"v_lshl_add_u32 v{vT+3}, v{vT+2}, 9, v{vT+3}"); a(f"v_lshl_add_u32 v{vT+3}, v{vT+1}, 3, v{vT+3}")
        a(f"s_add_u32 s{sT0}, s{sT0}, s{sT2}"); a(f"s_add_u32 s{sT0}, s{sT0}, {WS_K + 32*65536}")
        a(f"buffer_store_dwordx2 {vr(vEXf[0],2)}, v{vT+3}, s[{sWS}:{sWS+3}], s{sT0} offen{self.sc}")
        a(f"s_branch {pfx}_end")
        a.label(f"{pfx}_ev")
        a(f"s_lshl_b32 s{sT2}, s{sT2}, 9")
        a(f"v_lshlrev_b32 v{vT+3}, 4, v{vT}"); a(f"v_lshl_add_u32 v{vT+3}, v{vT+2}, 8, v{vT+3}"); a(f"v_lshl_add_u32 v{vT+3}, v{vT+1}, 3, v{vT+3}")
        a(f"s_add_u32 s{sT0}, s{sT0}, s{sT2}"); a(f"s_add_u32 s{sT0}, s{sT0}, {WS_V + 32*65536}")
        a(f"buffer_store_dwordx2 {vr(vEXf[0],2)}, v{vT+3}, s[{sWS}:{sWS+3}], s{sT0} offen{self.sc}")
        a(f"s_branch {pfx}_end")
        a.label(f"{pfx}_eg")
        a(f"v_mul_f32 v{vEAcc}, {fhex(-1.4426950408889634)}, v{vEAcc}"); a(f"v_exp_f32 v{vEAcc}, v{vEAcc}")
        a(f"s_lshl_b32 s{sT0}, s{sT0}, 7"); a(f"s_lshl_b32 s{sT2}, s{sT2}, 6"); a(f"s_add_u32 s{sT0}, s{sT0}, s{sT2}"); a(f"s_add_u32 s{sT0}, s{sT0}, {WS_G}")
        a(f"v_add_f32 v{vEAcc}, 1.0, v{vEAcc}"); a(f"v_rcp_f32 v{vEAcc}, v{vEAcc}")
        a(f"v_lshlrev_b32 v{vT}, 2, v{vT}"); a(f"v_cmp_eq_u32 vcc, 0, v{vT+1}")
        a(f"s_and_saveexec_b64 s[52:53], vcc")
        a(f"buffer_store_dword v{vEAcc}, v{vT}, s[{sWS}:{sWS+3}], s{sT0} offen{self.sc}")
        a(f"s_mov_b64 exec, s[52:53]")
        a.label(f"{pfx}_end")
        self.st("p_stores")
        a.c("---- publish: all stores drained in every wave, barrier, one flag store")
        a(f"v_readfirstlane_b32 s{sTok}, v{vTok}")
        a("s_nop 1")
        a(f"s_add_u32 s{sTok}, s{sTok}, {TOKC:#x}")
        a("s_waitcnt vmcnt(0)")
        a("s_barrier")
        self.st("p_drained")
        a(f"s_cmp_lg_u32 s{sW}, 0"); a(f"s_cbranch_scc1 {pfx}_noflag")
        a(f"s_lshl_b32 s{sT0}, s{sC}, 7"); a(f"s_lshl_b32 s{sT1}, s{sR}, 2"); a(f"s_add_u32 s{sT0}, s{sT0}, s{sT1}"); a(f"s_add_u32 s{sT0}, s{sT0}, {WS_F1}")
        a(f"v_mov_b32 v{vT}, s{sT0}"); a(f"v_mov_b32 v{vT+1}, s{sTok}")
        a("s_mov_b64 exec, 1")
        a(f"buffer_store_dword v{vT+1}, v{vT}, s[{sWS}:{sWS+3}], 0 offen sc1")
        a("s_mov_b64 exec, -1")
        a.label(f"{pfx}_noflag")

    def attn(self):
        a = self.a; pfx = "AT"; NQ, NW, U = 2, 8, self.U
        r = 2
        def alloc(n, al=1):
            nonlocal r
            r = (r + al - 1) // al * al; b = r; r += n; return b
        vLane16 = 1
        vQ = [alloc(4, 2) for _ in range(NQ)]; vNM = [alloc(16, 2) for _ in range(NQ)]; vO = [alloc(16, 2) for _ in range(NQ)]
        vX = alloc(16, 2); vY = alloc(16, 2)
        vK = alloc(4, 2); VA = [alloc(4, 2), alloc(4, 2)]; VB = [alloc(4, 2), alloc(4, 2)]
        vIdx = alloc(1); vAk = alloc(1); vAv0 = alloc(1); vAv1 = alloc(1); vT = alloc(4, 2)
        sHead, sQb, sKV, sSrc, sLds, sStep, sLStep, sQoff, sIt, sFlag, sT0, sT1, sOoff = 20, 21, 22, 23, 24, 25, 26, 27, 28, 29, 30, 31, 32
        self.at = dict(sHead=sHead, sQb=sQb)
        a.c("================ phase 2: attention")
        a(f"v_mbcnt_lo_u32_b32 v{vLane16}, -1, 0"); a(f"v_mbcnt_hi_u32_b32 v{vLane16}, -1, v{vLane16}")
        a(f"s_and_b32 s{sT0}, s2, 7"); a(f"s_lshr_b32 s{sT1}, s2, 3")
        a(f"s_and_b32 s{sQb}, s{sT1}, 3"); a(f"s_lshr_b32 s{sT1}, s{sT1}, 2")
        a(f"s_lshl_b32 s{sT0}, s{sT0}, 2"); a(f"s_and_b32 s{sHead}, s{sT1}, 3"); a(f"s_add_u32 s{sHead}, s{sHead}, s{sT0}")
        a(f"s_cmp_ge_u32 s{sT1}, 4"); a(f"s_cselect_b32 s{sKV}, 32, s{sHead}"); a(f"s_cselect_b32 s{sT0}, 32, 0"); a(f"s_add_u32 s{sHead}, s{sHead}, s{sT0}")
        a(f"s_cmp_lg_u32 s{sW}, 0"); a(f"s_cbranch_scc1 {pfx}_nopoll")
        a(f"s_and_b32 s{sT0}, s{sHead}, 31"); a(f"s_lshr_b32 s{sT0}, s{sT0}, 3")
        a(f"s_add_u32 s16, s{sT0}, 4"); a(f"s_add_u32 s17, s{sT0}, 8")
        a(f"s_cmp_ge_u32 s{sHead}, 32")
        a(f"s_cselect_b32 s16, {C_KB}, s16"); a(f"s_cselect_b32 s17, {C_VB}, s17"); a(f"s_cselect_b32 s{sT1}, 12, 0"); a(f"s_add_u32 s15, s{sT0}, s{sT1}")
        a(f"v_lshrrev_b32 v{vT}, 4, v{vLane16}")
        a(f"v_mov_b32 v{vT+1}, s15"); a(f"v_mov_b32 v{vT+2}, s16")
        a(f"v_cmp_eq_u32 vcc, 1, v{vT}"); a("s_nop 1"); a(f"v_cndmask_b32 v{vT+1}, v{vT+1}, v{vT+2}, vcc")
        a(f"v_mov_b32 v{vT+2}, s17"); a(f"v_cmp_le_u32 vcc, 2, v{vT}"); a("s_nop 1"); a(f"v_cndmask_b32 v{vT+1}, v{vT+1}, v{vT+2}, vcc")
        a(f"v_lshlrev_b32 v{vT+1}, 7, v{vT+1}"); a(f"v_and_b32 v{vT}, 15, v{vLane16}"); a(f"v_lshl_add_u32 v{vT+1}, v{vT}, 2, v{vT+1}")
        a(f"v_add_u32 v{vT+1}, {WS_F1}, v{vT+1}")
        self.poll(f"{pfx}_poll", vT+1, 1, vT+2)
        a.label(f"{pfx}_nopoll")
        a(f"v_and_b32 v{vT+1}, 31, v{vLane16}"); a(f"v_lshrrev_b32 v{vT+2}, 5, v{vLane16}"); a(f"v_lshlrev_b32 v{vAk}, 4, v{vLane16}")
        a(f"v_lshlrev_b32 v{vAv0}, 4, v{vT+1}")
        a(f"v_lshl_add_u32 v{vAv0}, v{vT+2}, 8, v{vAv0}")
        a(f"v_add_u32 v{vAv1}, 512, v{vAv0}")
        a(f"v_mov_b32 v{vT+3}, 1024"); a(f"v_cmp_eq_u32 vcc, 16, v{vT+1}"); a("s_nop 1")
        a(f"v_cndmask_b32 v{vAv0}, v{vAv0}, v{vT+3}, vcc"); a(f"v_cndmask_b32 v{vAv1}, v{vAv1}, v{vT+3}, vcc")
        a(f"v_mov_b32 v{vT+3}, 0x30000"); a(f"v_cmp_lt_u32 vcc, 16, v{vT+1}"); a("s_nop 1")
        a(f"v_cndmask_b32 v{vAv0}, v{vAv0}, v{vT+3}, vcc"); a(f"v_cndmask_b32 v{vAv1}, v{vAv1}, v{vT+3}, vcc")
        a(f"v_add_u32 v{vAv0}, {LDS_V}, v{vAv0}"); a(f"v_add_u32 v{vAv1}, {LDS_V}, v{vAv1}")
        a(f"v_mov_b32 v{vLane16}, v{vAk}")
        a(f"s_lshl_b32 s{sQoff}, s{sHead}, 16"); a(f"s_lshl_b32 s{sT0}, s{sQb}, 4"); a(f"s_mul_i32 s{sT1}, s{sW}, {NQ}"); a(f"s_add_u32 s{sT0}, s{sT0}, s{sT1}")
        a(f"s_lshl_b32 s{sT1}, s{sT0}, 10"); a(f"s_add_u32 s{sQoff}, s{sQoff}, s{sT1}"); a(f"s_add_u32 s{sOoff}, s{sQoff}, {WS_O - WS_Q}")
        a(f"s_lshl_b32 s{sT0}, s{sKV}, 16"); a(f"s_lshl_b32 s{sT1}, s{sW}, 10")
        a(f"s_add_u32 s{sSrc}, s{sT0}, s{sT1}"); a(f"s_add_u32 s{sStep}, s{sSrc}, {WS_V}"); a(f"s_add_u32 s{sSrc}, s{sSrc}, {WS_K}")
        a(f"s_mov_b32 s{sLds}, s{sT1}"); a(f"s_mul_i32 s{sLStep}, s{sW}, {VSTRIDE}"); a(f"s_add_u32 s{sLStep}, s{sLStep}, {LDS_V}")
        a(f"s_cmp_lg_u32 s{sW}, 1"); a(f"s_cbranch_scc1 {pfx}_noones")
        a(f"v_lshrrev_b32 v{vT}, 4, v{vLane16}"); a(f"v_mul_u32_u24 v{vT}, {VSTRIDE}, v{vT}"); a(f"v_add_u32 v{vT}, {LDS_V + 1024}, v{vT}")
        for i in range(4): a(f"v_mov_b32 v{vX+i}, 0x3f803f80")
        a(f"ds_write_b128 v{vT}, {vr(vX,4)}")
        a.label(f"{pfx}_noones")
        a(f"v_mov_b32 v{vIdx}, 0xdddddddd"); a(f"s_mov_b32 s{sFlag}, 0")
        for q in range(NQ):
            for i in range(16): a(f"v_mov_b32 v{vO[q]+i}, 0")
        a("s_barrier")
        self.st("a_polled")
        for q in range(NQ):
            if q: a(f"s_add_u32 s{sT1}, s{sQoff}, {1024*q}")
            a(f"buffer_load_dwordx4 {vr(vQ[q],4)}, v{vLane16}, s[{sWS}:{sWS+3}], s{sT1 if q else sQoff} offen{self.sc}")
        for c in range(8):
            a(f"s_mov_b32 m0, s{sLds}"); a(f"s_add_u32 s{sLds}, s{sLds}, 8192")
            a(f"buffer_load_dwordx4 v{vLane16}, s[{sWS}:{sWS+3}], s{sSrc} offen{self.sc} lds"); a(f"s_add_u32 s{sSrc}, s{sSrc}, 8192")
            a(f"s_mov_b32 m0, s{sLStep}"); a(f"s_add_u32 s{sLStep}, s{sLStep}, {8*VSTRIDE}")
            a(f"buffer_load_dwordx4 v{vLane16}, s[{sWS}:{sWS+3}], s{sStep} offen{self.sc} lds"); a(f"s_add_u32 s{sStep}, s{sStep}, 8192")
            if c == 0:
                pass
        a(f"s_waitcnt vmcnt(14) lgkmcnt(0)")
        a("s_barrier")
        self.st("a_chunk0")
        a.c("---- stand-in for the row max: max over key tile 0 (checked after the loop, exact fallback below)")
        a(f"ds_read_b128 {vr(vK,4)}, v{vAk}"); a("s_waitcnt lgkmcnt(0)")
        bufs = [vX, vY]
        for q in range(NQ): a(f"v_mfma_f32_32x32x16_bf16 {vr(bufs[q],16)}, {vr(vK,4)}, {vr(vQ[q],4)}, 0")
        a("s_nop 7"); a("s_nop 3")
        for q in range(NQ):
            S = bufs[q]
            a(f"v_max3_f32 v{vT}, v{S}, v{S+1}, v{S+2}"); a(f"v_max3_f32 v{vT+1}, v{S+3}, v{S+4}, v{S+5}")
            a(f"v_max3_f32 v{vT}, v{vT}, v{S+6}, v{S+7}"); a(f"v_max3_f32 v{vT+1}, v{vT+1}, v{S+8}, v{S+9}")
            a(f"v_max3_f32 v{vT}, v{vT}, v{S+10}, v{S+11}"); a(f"v_max3_f32 v{vT+1}, v{vT+1}, v{S+12}, v{S+13}")
            a(f"v_max3_f32 v{vT}, v{vT}, v{S+14}, v{S+15}"); a(f"v_max_f32 v{vT}, v{vT}, v{vT+1}")
            a(f"v_mov_b32 v{vT+1}, v{vT}"); a("s_nop 1"); a(f"v_permlane32_swap_b32 v{vT}, v{vT+1}"); a("s_nop 1")
            a(f"v_max_f32 v{vT}, v{vT}, v{vT+1}"); a(f"v_add_f32 v{vT}, {fhex(self.bias)}, v{vT}"); a(f"v_sub_f32 v{vNM[q]}, 0, v{vT}")
            for i in range(1, 16): a(f"v_mov_b32 v{vNM[q]+i}, v{vNM[q]}")
        a.label(f"{pfx}_run")
        a(f"ds_read_b128 {vr(vK,4)}, v{vAk}"); a(f"ds_read_b128 {vr(VA[0],4)}, v{vAv0}"); a(f"ds_read_b128 {vr(VB[0],4)}, v{vAv1}")
        for i in range(8): a(f"v_mov_b32 v{vY+8+i}, 0")
        for i in range(4): a(f"v_mov_b32 v{VB[1]+i}, 0")
        a("s_waitcnt lgkmcnt(0)")
        a(f"v_mfma_f32_32x32x16_bf16 {vr(vX,16)}, {vr(vK,4)}, {vr(vQ[0],4)}, {vr(vNM[0],16)}")
        a(f"s_mov_b32 s{sIt}, 0")
        if self.psw is not None:
            a(f"s_cmp_ge_u32 s{sW}, {NW//2}"); a(f"s_cbranch_scc1 {pfx}_p1")
            a("s_setprio 2"); a(f"s_branch {pfx}_p2")
            a.label(f"{pfx}_p1"); a("s_setprio 1"); a.label(f"{pfx}_p2")
        a("s_nop 7"); a("s_nop 3")
        self.st("a_loop")
        a(".p2align 3")
        a.label(f"{pfx}_loop")
        p1, p2, p3 = self.sched
        def slot(S, Sp, q, qp, qn, qk_wait, after_qk, rVa, rVb):
            ex = [f"v_exp_f32 v{S+i}, v{S+i}" for i in range(16)]
            for i in range(0, p1): a(ex[i])
            a(f"v_smfmac_f32_32x32x32_bf16 {vr(vO[qp],16)}, {vr(rVb,4)}, {vr(Sp+8,8)}, v{vIdx}")
            for i in range(p1, p2): a(ex[i])
            if qk_wait is not None: a(f"s_waitcnt lgkmcnt({qk_wait})")
            a(f"v_mfma_f32_32x32x16_bf16 {vr(Sp,16)}, {vr(vK,4)}, {vr(vQ[qn],4)}, {vr(vNM[qn],16)}")
            for s in after_qk: a(s)
            for i in range(p2, p3): a(ex[i])
            a(f"v_smfmac_f32_32x32x32_bf16 {vr(vO[q],16)}, {vr(rVa,4)}, {vr(S,8)}, v{vIdx}")
            for i in range(p3, 16): a(ex[i])
        for t in range(U):
            rk = f"ds_read_b128 {vr(vK,4)}, v{vAk} offset:{(t+1)*1024}"
            ra = f"ds_read_b128 {vr(VA[(t+1)&1],4)}, v{vAv0} offset:{(t+1)*VSTRIDE}"
            rb = f"ds_read_b128 {vr(VB[(t+1)&1],4)}, v{vAv1} offset:{(t+1)*VSTRIDE}"
            slot(vX, vY, 0, 1, 1, None, [rk, ra, rb], VA[t&1], VB[(t-1)&1])
            slot(vY, vX, 1, 0, 0, 0, [], VA[t&1], VB[t&1])
        a(f"v_add_u32 v{vAk}, {U*1024}, v{vAk}"); a(f"v_add_u32 v{vAv0}, {U*VSTRIDE}, v{vAv0}"); a(f"v_add_u32 v{vAv1}, {U*VSTRIDE}, v{vAv1}")
        a(f"s_add_u32 s{sIt}, s{sIt}, 1"); a(f"s_cmp_eq_u32 s{sIt}, {64//U}"); a(f"s_cbranch_scc1 {pfx}_done")
        if self.psw is not None:
            a(f"s_cmp_eq_u32 s{sIt}, {self.psw}"); a(f"s_cbranch_scc0 {pfx}_nosw")
            a(f"s_cmp_lt_u32 s{sW}, {NW//2}"); a(f"s_cbranch_scc0 {pfx}_nosw")
            a("s_setprio 0")
            a.label(f"{pfx}_nosw")
        a(f"s_cmp_eq_u32 s{sIt}, 1"); a(f"s_cbranch_scc0 {pfx}_loop")
        a(f"s_cmp_eq_u32 s{sFlag}, 0"); a(f"s_cbranch_scc0 {pfx}_loop")
        a("s_waitcnt vmcnt(0)"); a("s_barrier"); a(f"s_branch {pfx}_loop")
        a.label(f"{pfx}_done")
        a("s_setprio 0")
        self.st("a_loopend")
        a("s_waitcnt lgkmcnt(0)"); a("s_nop 1")
        a(f"v_smfmac_f32_32x32x32_bf16 {vr(vO[1],16)}, {vr(VB[1],4)}, {vr(vY+8,8)}, v{vIdx}")
        a(f"v_subrev_u32 v{vAk}, {64*1024}, v{vAk}"); a(f"v_subrev_u32 v{vAv0}, {64*VSTRIDE}, v{vAv0}"); a(f"v_subrev_u32 v{vAv1}, {64*VSTRIDE}, v{vAv1}")
        a("s_nop 7"); a("s_nop 3")
        a.c("---- was the stand-in safe?  (l and |O| finite and far from overflow / underflow)")
        a(f"s_cmp_lg_u32 s{sFlag}, 0"); a(f"s_cbranch_scc1 {pfx}_store")
        a("s_mov_b64 s[16:17], -1"); a(f"s_mov_b32 s{sT0}, {fhex(2.0**100)}"); a(f"s_mov_b32 s{sT1}, {fhex(2.0**-110)}")
        for q in range(NQ):
            O = vO[q]
            a(f"v_max3_f32 v{vT}, abs(v{O}), abs(v{O+1}), abs(v{O+2})"); a(f"v_max3_f32 v{vT}, abs(v{O+3}), abs(v{O+4}), v{vT}")
            a(f"v_max3_f32 v{vT}, abs(v{O+5}), abs(v{O+6}), v{vT}")
            a(f"v_add_f32 v{vT+1}, v{O}, v{O+1}"); a(f"v_add_f32 v{vT+2}, v{O+2}, v{O+3}"); a(f"v_add_f32 v{vT+3}, v{O+4}, v{O+5}")
            a(f"v_add_f32 v{vT+1}, v{vT+1}, v{vT+2}"); a(f"v_add_f32 v{vT+2}, v{O+6}, v{O+7}"); a(f"v_add_f32 v{vT+1}, v{vT+1}, v{vT+3}")
            a(f"v_max_f32 v{vT}, abs(v{O+7}), v{vT}"); a(f"v_add_f32 v{vT+1}, v{vT+1}, v{vT+2}")
            a(f"v_cmp_gt_f32 vcc, s{sT0}, v{vT}"); a("s_and_b64 s[16:17], s[16:17], vcc")
            a(f"v_cmp_lt_f32 vcc, s{sT1}, v{vT}"); a("s_and_b64 s[16:17], s[16:17], vcc")
            a(f"v_cmp_o_f32 vcc, v{vT+1}, v{vT+1}"); a("s_and_b64 s[16:17], s[16:17], vcc")
            a(f"v_mov_b32 v{vT}, v{O+8}"); a(f"v_mov_b32 v{vT+1}, v{O+8}"); a("s_nop 1")
            a(f"v_permlane32_swap_b32 v{vT}, v{vT+1}"); a("s_nop 1")
            a(f"v_cmp_gt_f32 vcc, s{sT0}, v{vT}"); a("s_and_b64 s[16:17], s[16:17], vcc")
        a("s_cmp_eq_u64 s[16:17], -1"); a(f"s_cbranch_scc1 {pfx}_store")
        a.c("---- fallback: true row max over all keys, then redo the pass")
        a(f"s_mov_b32 s{sFlag}, 1")
        for q in range(NQ): a(f"v_mov_b32 v{vNM[q]}, 0xff800000")
        a(f"s_mov_b32 s{sIt}, 0")
        a.label(f"{pfx}_fb_loop")
        a(f"ds_read_b128 {vr(vK,4)}, v{vAk}"); a("s_waitcnt lgkmcnt(0)")
        for q in range(NQ): a(f"v_mfma_f32_32x32x16_bf16 {vr(bufs[q],16)}, {vr(vK,4)}, {vr(vQ[q],4)}, 0")
        a("s_nop 7"); a("s_nop 7")
        for q in range(NQ):
            S = bufs[q]
            for i in range(0, 16, 2): a(f"v_max3_f32 v{vNM[q]}, v{vNM[q]}, v{S+i}, v{S+i+1}")
        a(f"v_add_u32 v{vAk}, 1024, v{vAk}")
        a(f"s_add_u32 s{sIt}, s{sIt}, 1"); a(f"s_cmp_lt_u32 s{sIt}, 64"); a(f"s_cbranch_scc1 {pfx}_fb_loop")
        a(f"v_subrev_u32 v{vAk}, {64*1024}, v{vAk}")
        for q in range(NQ):
            a(f"v_mov_b32 v{vT+1}, v{vNM[q]}"); a(f"v_mov_b32 v{vT}, v{vNM[q]}"); a("s_nop 1")
            a(f"v_permlane32_swap_b32 v{vT}, v{vT+1}"); a("s_nop 1")
            a(f"v_max_f32 v{vT}, v{vT}, v{vT+1}"); a(f"v_sub_f32 v{vNM[q]}, 0, v{vT}")
            for i in range(1, 16): a(f"v_mov_b32 v{vNM[q]+i}, v{vNM[q]}")
            for i in range(16): a(f"v_mov_b32 v{vO[q]+i}, 0")
        a(f"s_branch {pfx}_run")
        a.label(f"{pfx}_store")
        a.c("---- normalise and store o (fragment order)")
        for q in range(NQ):
            O = vO[q]
            a(f"v_mov_b32 v{vT}, v{O+8}"); a(f"v_mov_b32 v{vT+1}, v{O+8}"); a("s_nop 1")
            a(f"v_permlane32_swap_b32 v{vT}, v{vT+1}"); a("s_nop 1")
            a(f"v_rcp_f32 v{vT}, v{vT}"); a("s_nop 0")
            for i in range(8): a(f"v_mul_f32 v{O+i}, v{O+i}, v{vT}")
            for i in range(4): a(f"v_cvt_pk_bf16_f32 v{vX+4*q+i}, v{O+2*i}, v{O+2*i+1}")
            if q: a(f"s_add_u32 s{sOoff}, s{sOoff}, 1024")
            a(f"buffer_store_dwordx4 {vr(vX+4*q,4)}, v{vLane16}, s[{sWS}:{sWS+3}], s{sOoff} offen{self.sc}")
        self.st("a_stored")

    def outp(self):
        a = self.a; pfx = "OP"
        sWA, sWB, sOut = 16, 20, 24
        sHead, sQb = self.at["sHead"], self.at["sQb"]
        sH2, sQ2, sR, sC, sT0, sT1, sT2, sOsrc, sWsrc, sLds = 40, 41, 42, 43, 44, 45, 46, 47, 48, 49
        vLane, vL16, vWo, vOa, vT, vG = 1, 2, 3, 4, 6, 10
        vOf = [12, 16]; vAcc = 24; vP = 40; vWf = 64
        a.c("================ phase 3: output projection")
        a(f"s_mov_b32 s{sH2}, s{sHead}"); a(f"s_mov_b32 s{sQ2}, s{sQb}")
        a("s_load_dwordx2 s[4:5], s[0:1], 16"); a("s_load_dwordx2 s[6:7], s[0:1], 56"); a("s_load_dwordx2 s[50:51], s[0:1], 72")
        a(f"v_mbcnt_lo_u32_b32 v{vLane}, -1, 0"); a(f"v_mbcnt_hi_u32_b32 v{vLane}, -1, v{vLane}")
        a(f"s_and_b32 s{sT0}, s2, 7"); a(f"s_lshr_b32 s{sT1}, s2, 3")
        a(f"s_lshl_b32 s{sR}, s{sT0}, 2"); a(f"s_and_b32 s{sT2}, s{sT1}, 3"); a(f"s_add_u32 s{sR}, s{sR}, s{sT2}")
        a(f"s_lshr_b32 s{sC}, s{sT1}, 2")
        a(f"v_lshlrev_b32 v{vL16}, 4, v{vLane}")
        a(f"v_lshrrev_b32 v{vT}, 5, v{vLane}"); a(f"v_lshlrev_b32 v{vT}, 2, v{vT}")
        a(f"v_bfe_u32 v{vT+1}, v{vLane}, 2, 2"); a(f"v_add_u32 v{vT}, v{vT}, v{vT+1}"); a(f"v_lshlrev_b32 v{vT}, 10, v{vT}")
        a(f"v_bfe_u32 v{vT+1}, v{vLane}, 4, 1"); a(f"v_lshl_add_u32 v{vT}, v{vT+1}, 6, v{vT}")
        a(f"v_and_b32 v{vT+1}, 3, v{vLane}"); a(f"v_lshl_add_u32 v{vWo}, v{vT+1}, 4, v{vT}")
        a("s_waitcnt lgkmcnt(0)")
        srd(a, sWA, 4, 512*1024); srd(a, sWB, 6, 512*1024); srd(a, sOut, 50, 2048*1024)
        a.c("all waves are done with the K/V image in LDS -> W tile (64 heads x 2 KB) streams in")
        a("s_barrier")
        a(f"s_lshl_b32 s{sWsrc}, s{sW}, 14"); a(f"s_lshl_b32 s{sT0}, s{sC}, 7"); a(f"s_add_u32 s{sWsrc}, s{sWsrc}, s{sT0}")
        a(f"s_lshl_b32 s{sLds}, s{sW}, 11")
        for j in range(8):
            Wsrd = sWA if j < 4 else sWB
            a(f"s_add_u32 s{sT0}, s{sLds}, {j*8*2048}"); a(f"s_mov_b32 m0, s{sT0}")
            a(f"s_add_u32 s{sT1}, s{sWsrc}, {(j % 4)*8*16384}")
            a(f"buffer_load_dwordx4 v{vWo}, s[{Wsrd}:{Wsrd+3}], s{sT1} offen lds")
            a(f"s_add_u32 s{sT0}, s{sT0}, 1024"); a(f"s_mov_b32 m0, s{sT0}"); a(f"s_add_u32 s{sT1}, s{sT1}, 8192")
            a(f"buffer_load_dwordx4 v{vWo}, s[{Wsrd}:{Wsrd+3}], s{sT1} offen lds")
        a.c("o stores (older than the 16 DMA) drained -> barrier -> flag")
        a("s_waitcnt vmcnt(16)")
        a("s_barrier")
        self.st("o_drained")
        a(f"s_cmp_lg_u32 s{sW}, 0"); a(f"s_cbranch_scc1 {pfx}_noflag")
        a(f"s_lshl_b32 s{sT0}, s{sQ2}, 2"); a(f"s_lshr_b32 s{sT1}, s{sH2}, 4"); a(f"s_add_u32 s{sT0}, s{sT0}, s{sT1}"); a(f"s_lshl_b32 s{sT0}, s{sT0}, 7")
        a(f"s_and_b32 s{sT1}, s{sH2}, 15"); a(f"s_lshl_b32 s{sT1}, s{sT1}, 2"); a(f"s_add_u32 s{sT0}, s{sT0}, s{sT1}"); a(f"s_add_u32 s{sT0}, s{sT0}, {WS_F2}")
        a(f"v_mov_b32 v{vT}, s{sT0}"); a(f"v_mov_b32 v{vT+1}, s{sTok}")
        a("s_mov_b64 exec, 1")
        a(f"buffer_store_dword v{vT+1}, v{vT}, s[{sWS}:{sWS+3}], 0 offen sc1")
        a("s_mov_b64 exec, -1")
        a.label(f"{pfx}_noflag")
        a(f"v_lshrrev_b32 v{vT}, 5, v{vLane}"); a(f"v_lshlrev_b32 v{vT}, 9, v{vT}")
        a(f"v_bfe_u32 v{vT+1}, v{vLane}, 2, 2"); a(f"v_lshl_add_u32 v{vT}, v{vT+1}, 6, v{vT}")
        a(f"v_bfe_u32 v{vT+1}, v{vLane}, 4, 1"); a(f"v_lshl_add_u32 v{vT}, v{vT+1}, 5, v{vT}")
        a(f"v_and_b32 v{vT+1}, 3, v{vLane}"); a(f"v_lshl_add_u32 v{vT}, v{vT+1}, 3, v{vT}")
        a(f"s_lshr_b32 s{sT0}, s{sW}, 2"); a(f"s_lshl_b32 s{sT0}, s{sT0}, 16")
        a(f"s_bfe_u32 s{sT1}, s{sW}, 0x10001"); a(f"s_lshl_b32 s{sT1}, s{sT1}, 8"); a(f"s_add_u32 s{sT0}, s{sT0}, s{sT1}")
        a(f"v_add_u32 v{vT}, s{sT0}, v{vT}")
        a("s_waitcnt vmcnt(0)")
        a("s_barrier")
        self.st("o_wlanded")
        for hd in range(32):
            a(f"ds_read_b64_tr_b16 {vr(vWf+4*hd,2)}, v{vT} offset:{hd*2048}")
            a(f"ds_read_b64_tr_b16 {vr(vWf+4*hd+2,2)}, v{vT} offset:{hd*2048 + 1024}")
            if hd % 5 == 4: a("s_waitcnt lgkmcnt(4)")
        for i in range(16): a(f"v_mov_b32 v{vAcc+i}, 0")
        a(f"s_lshr_b32 s{sT0}, s{sW}, 2"); a(f"s_lshl_b32 s{sT0}, s{sT0}, 16"); a(f"s_and_b32 s{sT1}, s{sW}, 1"); a(f"s_lshl_b32 s{sT1}, s{sT1}, 10"); a(f"s_add_u32 s{sT0}, s{sT0}, s{sT1}")
        a(f"v_add_u32 v{vOa}, s{sT0}, v{vL16}")
        a(f"s_cmp_lg_u32 s{sW}, 0"); a(f"s_cbranch_scc1 {pfx}_nopoll")
        a(f"s_lshr_b32 s{sT0}, s{sR}, 3"); a(f"s_lshl_b32 s{sT0}, s{sT0}, 9"); a(f"s_add_u32 s{sT0}, s{sT0}, {WS_F2}")
        a(f"v_lshrrev_b32 v{vT}, 3, v{vLane}"); a(f"v_lshlrev_b32 v{vT+1}, 7, v{vT}"); a(f"v_add_u32 v{vT+1}, s{sT0}, v{vT+1}")
        a(f"v_mov_b32 v{vT+2}, {WS_F1 + C_G*128}"); a(f"v_cmp_le_u32 vcc, 4, v{vT}"); a("s_nop 1"); a(f"v_cndmask_b32 v{vT+1}, v{vT+1}, v{vT+2}, vcc")
        a(f"v_and_b32 v{vT}, 7, v{vLane}"); a(f"v_lshl_add_u32 v{vT+1}, v{vT}, 3, v{vT+1}")
        a("s_waitcnt lgkmcnt(0)")
        self.poll(f"{pfx}_poll", vT+1, 2, vT+2)
        a.c("every workgroup has read the token by now (transitively): advance it for the next launch")
        a("s_cmp_lg_u32 s2, 0"); a(f"s_cbranch_scc1 {pfx}_nopoll")
        a(f"v_mov_b32 v{vT}, {WS_TOK}"); a(f"v_mov_b32 v{vT+1}, s{sTok}")
        a("s_mov_b64 exec, 1")
        a(f"buffer_store_dword v{vT+1}, v{vT}, s[{sWS}:{sWS+3}], 0 offen sc1")
        a("s_mov_b64 exec, -1")
        a("s_waitcnt vmcnt(0)")
        a.label(f"{pfx}_nopoll")
        a("s_waitcnt lgkmcnt(0)")
        a("s_barrier")
        self.st("o_polled")
        a(f"v_and_b32 v{vT}, 31, v{vLane}"); a(f"v_lshlrev_b32 v{vT}, 2, v{vT}")
        a(f"s_lshl_b32 s{sT0}, s{sR}, 8"); a(f"s_and_b32 s{sT1}, s{sW}, 1"); a(f"s_lshl_b32 s{sT1}, s{sT1}, 7"); a(f"s_add_u32 s{sT0}, s{sT0}, s{sT1}"); a(f"s_add_u32 s{sT0}, s{sT0}, {WS_G}")
        a(f"buffer_load_dword v{vG}, v{vT}, s[{sWS}:{sWS+3}], s{sT0} offen{self.sc}")
        a(f"s_lshl_b32 s{sOsrc}, s{sW}, 16"); a(f"s_lshl_b32 s{sT0}, s{sR}, 11"); a(f"s_add_u32 s{sOsrc}, s{sOsrc}, s{sT0}"); a(f"s_add_u32 s{sOsrc}, s{sOsrc}, {WS_O}")
        a(f"s_lshl_b32 s{sLds}, s{sW}, 11")
        for j in range(4):
            for half in range(2):
                hb = 8*j + 32*half
                for tile in range(2):
                    a(f"s_add_u32 s{sT0}, s{sLds}, {hb*2048 + tile*1024}"); a(f"s_mov_b32 m0, s{sT0}")
                    a(f"s_add_u32 s{sT1}, s{sOsrc}, {hb*65536 + tile*1024}")
                    a(f"buffer_load_dwordx4 v{vL16}, s[{sWS}:{sWS+3}], s{sT1} offen{self.sc} lds")
        for j in range(4):
            a(f"s_waitcnt vmcnt({12 - 4*j})"); a("s_barrier")
            if j == 0: self.st("o_chunk0")
            a(f"ds_read_b128 {vr(vOf[0],4)}, v{vOa} offset:{8*j*2048}")
            for s in range(8):
                buf = s % 2
                if s < 7:
                    a(f"ds_read_b128 {vr(vOf[1-buf],4)}, v{vOa} offset:{(8*j+s+1)*2048}"); a("s_waitcnt lgkmcnt(1)")
                else: a("s_waitcnt lgkmcnt(0)")
                a(f"v_mfma_f32_32x32x16_bf16 {vr(vAcc,16)}, {vr(vWf+4*(8*j+s),4)}, {vr(vOf[buf],4)}, {vr(vAcc,16)}")
        self.st("o_gemm")
        a.c("---- gate, combine the A and B halves through LDS, store")
        a("s_barrier")
        a(f"v_sub_f32 v{vT+2}, 1.0, v{vG}")
        a(f"s_cmp_ge_u32 s{sW}, 4"); a("s_cselect_b64 vcc, -1, 0")
        a(f"v_cndmask_b32 v{vG}, v{vG}, v{vT+2}, vcc")
        a("s_nop 7")
        for i in range(16): a(f"v_mul_f32 v{vAcc+i}, v{vAcc+i}, v{vG}")
        a(f"s_and_b32 s{sT0}, s{sW}, 3"); a(f"s_lshl_b32 s{sT0}, s{sT0}, 12"); a(f"s_lshr_b32 s{sT1}, s{sW}, 2")
        a(f"s_lshl_b32 s{sT2}, s{sT1}, 11"); a(f"s_add_u32 s{sT2}, s{sT2}, s{sT0}")
        a(f"v_add_u32 v{vT}, s{sT2}, v{vL16}"); a(f"s_xor_b32 s{sT2}, s{sT2}, 2048"); a(f"v_add_u32 v{vT+1}, s{sT2}, v{vL16}")
        a(f"s_cmp_eq_u32 s{sT1}, 0"); a(f"s_cbranch_scc0 {pfx}_k1")
        for (keep, give, lbl) in ((0, 8, None), (8, 0, f"{pfx}_k1")):
            if lbl: a.label(lbl)
            a(f"ds_write_b128 v{vT}, {vr(vAcc+give,4)}"); a(f"ds_write_b128 v{vT}, {vr(vAcc+give+4,4)} offset:1024")
            a("s_waitcnt lgkmcnt(0)"); a("s_barrier")
            a(f"ds_read_b128 {vr(vP,4)}, v{vT+1}"); a(f"ds_read_b128 {vr(vP+4,4)}, v{vT+1} offset:1024")
            a("s_waitcnt lgkmcnt(0)")
            for i in range(8): a(f"v_add_f32 v{vP+i}, v{vP+i}, v{vAcc+keep+i}")
            if keep == 0: a(f"s_branch {pfx}_st")
        a.label(f"{pfx}_st")
        for i in range(4): a(f"v_cvt_pk_bf16_f32 v{vOf[0]+i}, v{vP+2*i}, v{vP+2*i+1}")
        a("s_nop 1")
        a(f"v_permlane32_swap_b32 v{vOf[0]}, v{vOf[0]+2}"); a(f"v_permlane32_swap_b32 v{vOf[0]+1}, v{vOf[0]+3}")
        a(f"v_and_b32 v{vT}, 31, v{vLane}"); a(f"v_lshlrev_b32 v{vT}, 10, v{vT}")
        a(f"v_lshrrev_b32 v{vT+1}, 5, v{vLane}"); a(f"v_lshl_add_u32 v{vT}, v{vT+1}, 4, v{vT}")
        a(f"s_lshl_b32 s{sT0}, s{sR}, 16"); a(f"s_and_b32 s{sT1}, s{sW}, 1"); a(f"s_lshl_b32 s{sT1}, s{sT1}, 15"); a(f"s_add_u32 s{sT0}, s{sT0}, s{sT1}")
        a(f"s_lshl_b32 s{sT1}, s{sC}, 7"); a(f"s_add_u32 s{sT0}, s{sT0}, s{sT1}")
        a(f"s_bfe_u32 s{sT1}, s{sW}, 0x10001"); a(f"s_lshl_b32 s{sT1}, s{sT1}, 6"); a(f"s_add_u32 s{sT0}, s{sT0}, s{sT1}")
        a(f"s_lshr_b32 s{sT1}, s{sW}, 2"); a(f"s_lshl_b32 s{sT1}, s{sT1}, 5"); a(f"s_add_u32 s{sT0}, s{sT0}, s{sT1}")
        a(f"buffer_store_dwordx4 {vr(vOf[0],4)}, v{vT}, s[{sOut}:{sOut+3}], s{sT0} offen")
        self.st("o_end")

    def build(self):
        a = self.a; name = NAME + "_kernel"
        a("s_cmp_ge_u32 s2, 256"); a("s_cbranch_scc1 L_exit")
        if self.stamp:
            a("v_mov_b32 v254, 0"); a("v_mov_b32 v255, 0")
        self.st("start")
        self.proj(); self.attn(); self.outp()
        self.st_dump()
        a.label("L_exit"); a("s_endpgm")
        ref = open(f"cdna_kernels/{NAME}.s.ref").read().split("\n")
        hdr = []
        for l in ref:
            if l.startswith("; Override") or not l.startswith(";"): break
            hdr.append(l)
        h = "\n".join(hdr) + f"\n; @launch grid=(256,1,1) block=(512,1,1) lds={LDS_TOTAL}\n" + '.amdgcn_target "amdgcn-amd-amdhsa--gfx950"\n'
        nv = 256 if self.stamp else 192
        return h + kernel_head(name) + a.text() + kernel_desc(name, nv, 102)

if __name__ == "__main__":
    g = Gen(); s = g.build(); open("fused.s", "w").write(s); print(len(s), "bytes")
    g = Gen(stamp=True); s = g.build(); open("fused_st.s", "w").write(s); open("fused_st.names", "w").write(",".join(g.stnames)); print(g.stnames)
    g = Gen(stamp="proj"); s = g.build(); open("fused_stp.s", "w").write(s); open("fused_stp.names", "w").write(",".join(g.stnames))
    if len(sys.argv) > 1 and sys.argv[1] == "install":
        open(f"cdna_kernels/{NAME}.s", "w").write(open("fused.s").read())
```

```python
import struct, sys
from asmlib import *
NAME = "gated_mix__softmax_full_mha__grouped_kv_mqa__prompt"
def fhex(x): return "0x%08x" % struct.unpack("<I", struct.pack("<f", x))[0]
WS_Q, WS_K, WS_V, WS_G, WS_O = 0x000000, 0x400000, 0x620000, 0x840000, 0x900000
WS_F1, WS_F2, WS_TOK = 0xD00000, 0xD01000, 0xD02000
WS_FX, WS_XT = 0xD03000, 0xD04000
WS_DBG = 0xE00000
WS_USED = 0x1000000
TOKC = 0x9E3779B9
SPIN = 1 << 17
PSLOT = 34816
LDS_K, LDS_V, VSTRIDE = 0, 65536, 1040
LDS_TOTAL = 4 * PSLOT
QSCALE = 0.25 * 1.4426950408889634
G_KB, G_VB, G_G = 0, 1, 2
sW, sWS, sTok = 3, 8, 12
SC1 = " sc1"

class Gen:
    def __init__(self, stamp=False, bias=96.0, sched=(2, 5, 10), U=8, psw=7, sc1=True, rot=False, sleep=2, exp=None, xt_at=5, force_slow=False, kvsc=True, wopf=True):
        self.wopf = wopf
        self.kvsc = ' sc1' if kvsc else ''
        self.xt_at = xt_at; self.force_slow = force_slow
        self.rot = rot; self.sleep = sleep; self.exp = exp
        self.a = Asm(); self.stamp = stamp; self.bias = bias; self.sched = sched; self.U = U; self.psw = psw
        self.sc = SC1 if sc1 else ""
        self.nst = 0; self.stnames = []
    def st(self, name):
        if not self.stamp: return
        a = self.a; i = self.nst; self.nst += 1; self.stnames.append(name)
        a("s_memtime s[96:97]"); a("s_memrealtime s[98:99]"); a("s_waitcnt lgkmcnt(0)")
        a(f"v_writelane_b32 v254, s96, {i}"); a(f"v_writelane_b32 v255, s98, {i}")
    def st_at(self, name, i):
        a = self.a
        a("s_memtime s[96:97]"); a("s_memrealtime s[98:99]"); a("s_waitcnt lgkmcnt(0)")
        a(f"v_writelane_b32 v254, s96, {i}"); a(f"v_writelane_b32 v255, s98, {i}")
    def st_dump_dbg(self):
        a = self.a
        a("s_load_dwordx2 s[4:5], s[0:1], 80"); a("s_waitcnt vmcnt(0) lgkmcnt(0)")
        srd(a, 16, 4, 256)
        a("v_mbcnt_lo_u32_b32 v253, -1, 0"); a("v_mbcnt_hi_u32_b32 v253, -1, v253")
        a("v_not_b32 v252, v255"); a("v_cmp_eq_u32 vcc, 0, v253"); a("s_nop 1"); a("v_cndmask_b32 v255, v255, v252, vcc")
        a(f"v_cmp_gt_u32 vcc, {self.nst}, v253"); a("v_lshlrev_b32 v253, 2, v253")
        a("s_and_saveexec_b64 s[20:21], vcc")
        a("buffer_atomic_umax v255, v253, s[16:19], 0 offen")
        a("s_mov_b64 exec, s[20:21]")
    def st_dump(self):
        if not self.stamp: return
        if self.stamp == "dbg": return self.st_dump_dbg()
        a = self.a
        a("s_waitcnt vmcnt(0)")
        a(f"s_lshl_b32 s96, s2, 3"); a(f"s_add_u32 s96, s96, s{sW}"); a("s_lshl_b32 s96, s96, 9"); a(f"s_add_u32 s96, s96, {WS_DBG}")
        a("v_mbcnt_lo_u32_b32 v253, -1, 0"); a("v_mbcnt_hi_u32_b32 v253, -1, v253"); a("v_lshlrev_b32 v253, 2, v253")
        a(f"buffer_store_dword v254, v253, s[{sWS}:{sWS+3}], s96 offen")
        a(f"buffer_store_dword v255, v253, s[{sWS}:{sWS+3}], s96 offen offset:256")
    def poll(self, lbl, vaddr, n, vtmp, once=False, smask=16):
        a = self.a
        a(f"s_mov_b32 s14, {SPIN}")
        a.label(lbl)
        if n == 1: a(f"buffer_load_dword v{vtmp}, v{vaddr}, s[{sWS}:{sWS+3}], 0 offen sc1")
        else: a(f"buffer_load_dwordx2 v[{vtmp}:{vtmp+1}], v{vaddr}, s[{sWS}:{sWS+3}], 0 offen sc1")
        a("s_waitcnt vmcnt(0)")
        a(f"v_cmp_eq_u32 vcc, s{sTok}, v{vtmp}")
        if n == 2:
            a(f"v_cmp_eq_u32 s[{smask}:{smask+1}], s{sTok}, v{vtmp+1}")
            a("s_nop 1"); a(f"s_and_b64 vcc, vcc, s[{smask}:{smask+1}]")
        a("s_nop 1")
        a("s_cmp_eq_u64 vcc, -1")
        if once: return
        a(f"s_cbranch_scc1 {lbl}_ok")
        a(f"s_sleep {self.sleep}")
        a("s_sub_u32 s14, s14, 1"); a("s_cmp_lg_u32 s14, 0"); a(f"s_cbranch_scc1 {lbl}")
        a.label(f"{lbl}_ok")

    def proj(self):
        a = self.a; pfx = "PJ"
        sX, sW_, sE = 16, 20, 24
        sR, sG, sCt, sLdW, sT0, sT1, sT2 = 28, 29, 30, 31, 32, 33, 34
        sXsrc, sWsrc, sEsrc, sLds, sKind, sEstep, sL, sX2, sW2, sTyp, sXcc = 35, 36, 37, 38, 39, 42, 43, 56, 57, 58, 59
        vLane, vXo0, vXo1, vWo, vEo = 1, 2, 3, 4, 5
        vXa = [6, 7, 8, 9]; vXb = [10, 11, 12, 13]; vWa, vWb = 14, 15
        vT = 16; vEx, vEw, vTok = 20, 21, 22; vSt = 23; vXt = 56
        vXf = [[24, 28], [32, 36]]; vWf = [[40, 44], [48, 52]]; vAcc = [64, 80, 96, 112]
        vEAcc = [56, 60]; vEXf = [[24, 28], [32, 36]]; vEWf = [40, 44]
        a.c("================ phase 1: projections")
        a("s_load_dwordx4 s[4:7], s[0:1], 0")
        a("s_load_dwordx2 s[40:41], s[0:1], 32")
        a("s_load_dwordx4 s[44:47], s[0:1], 40")
        a("s_load_dwordx2 s[48:49], s[0:1], 64")
        a("s_load_dwordx2 s[50:51], s[0:1], 88")
        a("s_load_dwordx2 s[60:61], s[0:1], 16")
        a("s_load_dwordx2 s[62:63], s[0:1], 56")
        a("s_load_dwordx2 s[64:65], s[0:1], 72")
        a(f"v_lshrrev_b32 v{vT}, 6, v0")
        a(f"v_and_b32 v{vLane}, 63, v0")
        a(f"v_readfirstlane_b32 s{sW}, v{vT}")
        a(f"s_and_b32 s{sG}, s2, 7"); a(f"s_lshr_b32 s{sT1}, s2, 3")
        a(f"s_and_b32 s{sCt}, s{sT1}, 1"); a(f"s_lshr_b32 s{sR}, s{sT1}, 1")
        a(f"s_mov_b32 s{sKind}, 0")
        for k, gg in ((1, G_KB), (2, G_VB), (3, G_G)):
            a(f"s_cmp_eq_u32 s{sG}, {gg}"); a(f"s_cselect_b32 s{sKind}, {k}, s{sKind}")
        a(f"s_cmp_eq_u32 s{sCt}, 0"); a(f"s_cselect_b32 s{sKind}, s{sKind}, 0")
        a(f"s_cmp_lt_u32 s{sW}, 4"); a(f"s_cbranch_scc1 {pfx}_comp")
        a(f"s_sub_u32 s{sL}, s{sW}, 4")
        a(f"s_lshr_b32 s{sT0}, s{sL}, 1"); a(f"s_lshl_b32 s{sTyp}, s{sCt}, 1"); a(f"s_add_u32 s{sTyp}, s{sTyp}, s{sT0}")
        a(f"s_cmp_eq_u32 s{sTyp}, 3"); a(f"s_mov_b32 s{sLdW}, 3072"); a(f"s_cselect_b32 s{sLdW}, 1024, s{sLdW}")
        a(f"v_lshrrev_b32 v{vT}, 3, v{vLane}"); a(f"v_lshrrev_b32 v{vT+1}, 4, v{vLane}"); a(f"v_and_b32 v{vT+2}, 7, v{vLane}")
        a(f"v_xor_b32 v{vT+3}, v{vT+2}, v{vT+1}"); a(f"v_lshlrev_b32 v{vT+3}, 4, v{vT+3}")
        a(f"v_lshl_add_u32 v{vXo0}, v{vT}, 10, v{vT+3}")
        a(f"v_xor_b32 v{vXo1}, 64, v{vXo0}"); a(f"v_add_u32 v{vXo1}, 8192, v{vXo1}")
        a(f"v_lshrrev_b32 v{vT}, 5, v{vLane}"); a(f"v_lshlrev_b32 v{vT}, 2, v{vT}"); a(f"v_bfe_u32 v{vT+1}, v{vLane}, 2, 2"); a(f"v_add_u32 v{vT}, v{vT}, v{vT+1}")
        a(f"v_mul_lo_u32 v{vT}, v{vT}, s{sLdW}")
        a(f"v_bfe_u32 v{vT+1}, v{vLane}, 4, 1"); a(f"v_lshl_add_u32 v{vT}, v{vT+1}, 6, v{vT}")
        a(f"v_and_b32 v{vT+1}, 3, v{vLane}"); a(f"v_lshl_add_u32 v{vWo}, v{vT+1}, 4, v{vT}")
        a(f"v_lshlrev_b32 v{vEo}, 4, v{vLane}")
        a(f"s_lshl_b32 s{sXsrc}, s{sR}, 17"); a(f"s_lshl_b32 s{sT0}, s{sL}, 15"); a(f"s_add_u32 s{sXsrc}, s{sXsrc}, s{sT0}")
        a(f"s_and_b32 s{sT0}, s{sL}, 1"); a(f"s_mul_i32 s{sWsrc}, s{sT0}, s{sLdW}"); a(f"s_lshl_b32 s{sWsrc}, s{sWsrc}, 5")
        a(f"s_lshl_b32 s{sT0}, s{sG}, 7")
        a(f"s_lshl_b32 s{sT1}, s{sTyp}, 10"); a(f"s_cmp_eq_u32 s{sTyp}, 3"); a(f"s_cselect_b32 s{sT1}, 0, s{sT1}")
        a(f"s_add_u32 s{sWsrc}, s{sWsrc}, s{sT0}"); a(f"s_add_u32 s{sWsrc}, s{sWsrc}, s{sT1}")
        a(f"s_lshl_b32 s{sEsrc}, s{sL}, 9"); a(f"s_mov_b32 s{sEstep}, 2048")
        a(f"s_cmp_eq_u32 s{sKind}, 3"); a(f"s_cselect_b32 s{sEstep}, 128, s{sEstep}"); a(f"s_cselect_b32 s{sT0}, 0x100000, 0")
        a(f"s_cmp_eq_u32 s{sL}, 0"); a(f"s_cselect_b32 s{sT0}, 0, s{sT0}"); a(f"s_add_u32 s{sEsrc}, s{sEsrc}, s{sT0}")
        a("s_waitcnt lgkmcnt(0)")
        srd(a, sWS, 50, WS_USED)
        srd(a, sX, 4, 2048*1024)
        a(f"s_cmp_eq_u32 s{sTyp}, 3")
        a(f"s_cselect_b32 s{sW_}, s40, s6"); a(f"s_cselect_b32 s{sW_+1}, s41, s7"); a(f"s_and_b32 s{sW_+1}, s{sW_+1}, 0xffff")
        a(f"s_lshl_b32 s{sW_+2}, s{sLdW}, 9"); a(f"s_mov_b32 s{sW_+3}, 0x00020000")
        a(f"s_mov_b32 s{sE}, s44"); a(f"s_mov_b32 s{sE+1}, s45"); a(f"s_mov_b32 s{sE+2}, 0")
        a(f"s_cmp_eq_u32 s{sKind}, 1"); a(f"s_cselect_b32 s{sE+2}, 16384, s{sE+2}")
        a(f"s_cmp_eq_u32 s{sKind}, 2"); a(f"s_cselect_b32 s{sE}, s46, s{sE}"); a(f"s_cselect_b32 s{sE+1}, s47, s{sE+1}"); a(f"s_cselect_b32 s{sE+2}, 16384, s{sE+2}")
        a(f"s_cmp_eq_u32 s{sKind}, 3"); a(f"s_cselect_b32 s{sE}, s48, s{sE}"); a(f"s_cselect_b32 s{sE+1}, s49, s{sE+1}"); a(f"s_cselect_b32 s{sE+2}, 1024, s{sE+2}")
        a(f"s_and_b32 s{sE+1}, s{sE+1}, 0xffff"); a(f"s_mov_b32 s{sE+3}, 0x00020000")
        def dma_chunk(i):
            slot = i % 4
            a(f"s_lshl_b32 s{sLds}, s{sL}, 12"); a(f"s_add_u32 s{sLds}, s{sLds}, {slot*PSLOT}")
            a(f"s_mov_b32 s{sX2}, s{sXsrc}")
            for j in range(4):
                a(f"s_mov_b32 m0, s{sLds}"); a(f"s_add_u32 s{sLds}, s{sLds}, {1024 if j < 3 else 16384 - 3072}")
                if j == 2: a(f"s_add_u32 s{sX2}, s{sX2}, 16384")
                a(f"buffer_load_dwordx4 v{vXo0 if j % 2 == 0 else vXo1}, s[{sX}:{sX+3}], s{sX2} offen lds")
            a(f"s_add_u32 s{sXsrc}, s{sXsrc}, 128")
            a(f"s_mov_b32 s{sW2}, s{sWsrc}")
            for j in range(4):
                a(f"s_mov_b32 m0, s{sLds}"); a(f"s_add_u32 s{sLds}, s{sLds}, 1024")
                a(f"buffer_load_dwordx4 v{vWo}, s[{sW_}:{sW_+3}], s{sW2} offen lds")
                if j < 3: a(f"s_lshl_b32 s{sT1}, s{sLdW}, 3"); a(f"s_add_u32 s{sW2}, s{sW2}, s{sT1}")
            a(f"s_lshl_b32 s{sT1}, s{sLdW}, 6"); a(f"s_add_u32 s{sWsrc}, s{sWsrc}, s{sT1}")
            a(f"s_lshl_b32 s{sT0}, s{sL}, 9"); a(f"s_add_u32 s{sT0}, s{sT0}, {slot*PSLOT + 32768}")
            a(f"s_mov_b32 m0, s{sT0}")
            a(f"s_mov_b32 exec_hi, 0")
            a(f"buffer_load_dwordx4 v{vEo}, s[{sE}:{sE+3}], s{sEsrc} offen lds")
            a(f"s_mov_b32 exec_hi, -1")
            a(f"s_add_u32 s{sEsrc}, s{sEsrc}, s{sEstep}")
        dma_chunk(0); dma_chunk(1); dma_chunk(2)
        self.st("p_dma")
        a(f"v_mov_b32 v{vT}, {WS_TOK}")
        a(f"buffer_load_dword v{vTok}, v{vT}, s[{sWS}:{sWS+3}], 0 offen sc1")
        a(f"v_and_b32 v{vT}, 15, v{vLane}"); a(f"v_lshrrev_b32 v{vT+1}, 4, v{vLane}"); a(f"v_bfe_u32 v{vT+2}, v{vLane}, 1, 3")
        a(f"v_xor_b32 v{vT+2}, v{vT+2}, v{vT+1}"); a(f"v_lshlrev_b32 v{vT+2}, 4, v{vT+2}")
        a(f"v_lshl_add_u32 v{vEx}, v{vT}, 7, v{vT+2}")
        a(f"s_lshl_b32 s{sT0}, s{sL}, 12"); a(f"v_add_u32 v{vEx}, s{sT0}, v{vEx}")
        a(f"v_bfe_u32 v{vT}, v{vLane}, 2, 2"); a(f"v_lshl_add_u32 v{vT}, v{vT+1}, 3, v{vT}"); a(f"v_lshlrev_b32 v{vT}, 5, v{vT}")
        a(f"v_and_b32 v{vT+2}, 3, v{vLane}"); a(f"v_lshl_add_u32 v{vEw}, v{vT+2}, 3, v{vT}")
        a(f"v_lshlrev_b32 v{vT}, 4, v{vT+1}")
        a(f"s_cmp_eq_u32 s{sKind}, 3"); a("s_cselect_b64 vcc, -1, 0"); a(f"v_cndmask_b32 v{vEw}, v{vEw}, v{vT}, vcc")
        a(f"v_add_u32 v{vEw}, 32768, v{vEw}")
        for b in vEAcc:
            for i in range(4): a(f"v_mov_b32 v{b+i}, 0")
        def ex_reads(i, kind):
            slot = i % 4
            for s2 in range(2):
                a(f"v_add_u32 v{vT}, {slot*PSLOT}, v{vEx}")
                if s2: a(f"v_xor_b32 v{vT}, 64, v{vT}")
                a(f"ds_read_b128 {vr(vEXf[s2][0],4)}, v{vT}"); a(f"ds_read_b128 {vr(vEXf[s2][1],4)}, v{vT} offset:2048")
                if kind < 3:
                    a(f"v_add_u32 v{vT+1}, {slot*PSLOT + s2*1024}, v{vEw}")
                    a(f"ds_read_b64_tr_b16 {vr(vEWf[s2],2)}, v{vT+1}"); a(f"ds_read_b64_tr_b16 {vr(vEWf[s2]+2,2)}, v{vT+1} offset:128")
                else:
                    a(f"v_add_u32 v{vT+1}, {slot*PSLOT + s2*64}, v{vEw}")
                    a(f"ds_read_b128 {vr(vEWf[s2],4)}, v{vT+1}")
        def ex_mfma(kind):
            a("s_waitcnt lgkmcnt(0)")
            for s2 in range(2):
                for cI in range(2):
                    if kind == 2: a(f"v_mfma_f32_16x16x32_bf16 {vr(vEAcc[cI],4)}, {vr(vEXf[s2][cI],4)}, {vr(vEWf[s2],4)}, {vr(vEAcc[cI],4)}")
                    else: a(f"v_mfma_f32_16x16x32_bf16 {vr(vEAcc[cI],4)}, {vr(vEWf[s2],4)}, {vr(vEXf[s2][cI],4)}, {vr(vEAcc[cI],4)}")
        def loader_loop(kind):
            for i in range(8):
                a(f"s_waitcnt vmcnt({[19, 18, 18, 18, 18, 18, 9, 0][i]})")
                a("s_barrier")
                if kind: ex_reads(i, kind)
                if i + 3 < 8: dma_chunk(i + 3)
                if kind: ex_mfma(kind)
        for k in (1, 2, 3):
            a(f"s_cmp_eq_u32 s{sKind}, {k}"); a(f"s_cbranch_scc1 {pfx}_l{k}")
        loader_loop(0); a(f"s_branch {pfx}_end")
        for k in (1, 2, 3):
            a.label(f"{pfx}_l{k}"); loader_loop(k)
            if k < 3: a(f"s_branch {pfx}_lepi")
        a.label(f"{pfx}_lepi")
        a.c("---- epilogue of the extra chains (read by every group: write-through): tile = 4 r + l, half = cI")
        a("s_nop 7")
        a(f"s_lshl_b32 s{sT0}, s{sR}, 2"); a(f"s_add_u32 s{sT0}, s{sT0}, s{sL}")
        a(f"v_and_b32 v{vT}, 15, v{vLane}"); a(f"v_lshrrev_b32 v{vT+1}, 4, v{vLane}")
        a(f"s_cmp_eq_u32 s{sKind}, 3"); a(f"s_cbranch_scc1 {pfx}_eg")
        for cI in range(2):
            a(f"v_cvt_pk_bf16_f32 v{vEXf[cI][0]}, v{vEAcc[cI]}, v{vEAcc[cI]+1}"); a(f"v_cvt_pk_bf16_f32 v{vEXf[cI][0]+1}, v{vEAcc[cI]+2}, v{vEAcc[cI]+3}")
        a(f"v_and_b32 v{vT+2}, 1, v{vT+1}"); a(f"v_lshrrev_b32 v{vT+1}, 1, v{vT+1}")
        a(f"s_lshl_b32 s{sT0}, s{sT0}, 10")
        a(f"s_cmp_eq_u32 s{sKind}, 2"); a(f"s_cbranch_scc1 {pfx}_ev")
        a(f"v_and_b32 v{vT+3}, 3, v{vT}")
        a(f"v_bfe_u32 v{vEx}, v{vT}, 2, 1"); a(f"v_lshl_or_b32 v{vT+3}, v{vEx}, 3, v{vT+3}")
        a(f"v_bfe_u32 v{vEx}, v{vT}, 3, 1"); a(f"v_lshl_or_b32 v{vT+3}, v{vEx}, 2, v{vT+3}")
        a(f"v_lshlrev_b32 v{vT+3}, 4, v{vT+3}"); a(f"v_lshl_add_u32 v{vT+3}, v{vT+2}, 9, v{vT+3}"); a(f"v_lshl_add_u32 v{vT+3}, v{vT+1}, 3, v{vT+3}")
        a(f"s_add_u32 s{sT0}, s{sT0}, {WS_K + 32*65536}")
        for cI in range(2): a(f"buffer_store_dwordx2 {vr(vEXf[cI][0],2)}, v{vT+3}, s[{sWS}:{sWS+3}], s{sT0} offen offset:{256*cI} sc1")
        a(f"s_branch {pfx}_end")
        a.label(f"{pfx}_ev")
        a(f"v_lshlrev_b32 v{vT+3}, 4, v{vT}"); a(f"v_lshl_add_u32 v{vT+3}, v{vT+2}, 8, v{vT+3}"); a(f"v_lshl_add_u32 v{vT+3}, v{vT+1}, 3, v{vT+3}")
        a(f"s_add_u32 s{sT0}, s{sT0}, {WS_V + 32*65536}")
        for cI in range(2): a(f"buffer_store_dwordx2 {vr(vEXf[cI][0],2)}, v{vT+3}, s[{sWS}:{sWS+3}], s{sT0} offen offset:{512*cI} sc1")
        a(f"s_branch {pfx}_end")
        a.label(f"{pfx}_eg")
        a(f"s_lshl_b32 s{sT0}, s{sT0}, 7"); a(f"s_add_u32 s{sT0}, s{sT0}, {WS_G}")
        a(f"v_lshlrev_b32 v{vT}, 2, v{vT}"); a(f"v_cmp_eq_u32 vcc, 0, v{vT+1}")
        for cI in range(2):
            e = vEAcc[cI]
            a(f"v_mul_f32 v{e}, {fhex(-1.4426950408889634)}, v{e}"); a(f"v_exp_f32 v{e}, v{e}"); a("s_nop 0")
            a(f"v_add_f32 v{e}, 1.0, v{e}"); a(f"v_rcp_f32 v{e}, v{e}")
        a(f"s_and_saveexec_b64 s[52:53], vcc")
        for cI in range(2): a(f"buffer_store_dword v{vEAcc[cI]}, v{vT}, s[{sWS}:{sWS+3}], s{sT0} offen offset:{64*cI} sc1")
        a(f"s_mov_b64 exec, s[52:53]")
        a(f"s_branch {pfx}_end")
        a.label(f"{pfx}_comp")
        a(f"s_lshr_b32 s{sT0}, s{sW}, 1"); a(f"s_lshl_b32 s{sTyp}, s{sCt}, 1"); a(f"s_add_u32 s{sTyp}, s{sTyp}, s{sT0}")
        a(f"s_getreg_b32 s{sXcc}, hwreg(HW_REG_XCC_ID, 0, 4)")
        a(f"v_and_b32 v{vT}, 31, v{vLane}"); a(f"v_lshrrev_b32 v{vT+1}, 5, v{vLane}"); a(f"v_bfe_u32 v{vT+2}, v{vLane}, 1, 3")
        a(f"s_and_b32 s{sT0}, s{sW}, 1"); a(f"s_lshl_b32 s{sT0}, s{sT0}, 13")
        a(f"v_lshlrev_b32 v{vT}, 7, v{vT}"); a(f"v_add_u32 v{vT}, s{sT0}, v{vT}")
        for s in range(4):
            a(f"v_add_u32 v{vT+3}, {2*s}, v{vT+1}"); a(f"v_xor_b32 v{vT+3}, v{vT+3}, v{vT+2}")
            a(f"v_lshl_add_u32 v{vXa[s]}, v{vT+3}, 4, v{vT}"); a(f"v_add_u32 v{vXb[s]}, {2*PSLOT}, v{vXa[s]}")
        a(f"v_lshlrev_b32 v{vT+1}, 10, v{vT+1}")
        a(f"v_bfe_u32 v{vT+2}, v{vLane}, 2, 2"); a(f"v_lshl_add_u32 v{vT+1}, v{vT+2}, 6, v{vT+1}")
        a(f"v_bfe_u32 v{vT+2}, v{vLane}, 4, 1"); a(f"v_lshl_add_u32 v{vT+1}, v{vT+2}, 5, v{vT+1}")
        a(f"v_and_b32 v{vT+2}, 3, v{vLane}"); a(f"v_lshl_add_u32 v{vT+1}, v{vT+2}, 3, v{vT+1}")
        a(f"s_lshr_b32 s{sT0}, s{sW}, 1"); a(f"s_lshl_b32 s{sT0}, s{sT0}, 13"); a(f"s_add_u32 s{sT0}, s{sT0}, 16384")
        a(f"v_add_u32 v{vWa}, s{sT0}, v{vT+1}"); a(f"v_add_u32 v{vWb}, {2*PSLOT}, v{vWa}")
        for b in vAcc:
            for i in range(16): a(f"v_mov_b32 v{b+i}, 0")
        a("s_waitcnt lgkmcnt(0)")
        srd(a, sWS, 50, WS_USED)
        a(f"v_mov_b32 v{vT}, {WS_TOK}")
        a(f"buffer_load_dword v{vTok}, v{vT}, s[{sWS}:{sWS+3}], 0 offen sc1")
        self.st_at("c", 1) if self.stamp else None
        a(f"s_lshl_b32 s{sT0}, s{sG}, 2"); a(f"s_cmp_eq_u32 s{sTyp}, 3"); a(f"s_cselect_b32 s{sT1}, 32, 0"); a(f"s_add_u32 s{sT0}, s{sT0}, s{sT1}")
        a(f"s_lshl_b32 s{sT0}, s{sT0}, 16")
        a(f"s_lshl_b32 s{sT1}, s{sR}, 2"); a(f"s_and_b32 s{sT2}, s{sW}, 1"); a(f"s_lshl_b32 s{sT2}, s{sT2}, 1"); a(f"s_add_u32 s{sT1}, s{sT1}, s{sT2}"); a(f"s_lshl_b32 s{sT1}, s{sT1}, 10")
        a(f"s_add_u32 s52, s{sT0}, s{sT1}")
        def reads(i, s, buf):
            slot = i % 4
            xa = (vXa if slot < 2 else vXb)[s]; wa = vWa if slot < 2 else vWb
            o = (slot % 2) * PSLOT
            a(f"ds_read_b128 {vr(vXf[buf][0],4)}, v{xa} offset:{o}")
            a(f"ds_read_b64_tr_b16 {vr(vWf[buf][0],2)}, v{wa} offset:{o + s*2048}")
            a(f"ds_read_b64_tr_b16 {vr(vWf[buf][0]+2,2)}, v{wa} offset:{o + s*2048 + 512}")
            a(f"ds_read_b128 {vr(vXf[buf][1],4)}, v{xa} offset:{o+4096}")
            a(f"ds_read_b64_tr_b16 {vr(vWf[buf][1],2)}, v{wa} offset:{o + s*2048 + 256}")
            a(f"ds_read_b64_tr_b16 {vr(vWf[buf][1]+2,2)}, v{wa} offset:{o + s*2048 + 512 + 256}")
        def comp_loop(vtype, lbl):
            a("s_barrier")
            reads(0, 0, 0)
            for i in range(8):
                if self.stamp == "proj": self.st_at(f"pb{i}", 20 + i)
                if i == 1:
                    a("s_waitcnt vmcnt(0)")
                    a(f"v_readfirstlane_b32 s{sTok}, v{vTok}"); a("s_nop 1")
                    a(f"s_add_u32 s{sXcc}, s{sXcc}, 1"); a(f"s_add_u32 s{sTok}, s{sTok}, {TOKC:#x}"); a(f"s_add_u32 s{sXcc}, s{sXcc}, s{sTok}")
                    a(f"s_cmp_lg_u32 s{sW}, 0"); a(f"s_cbranch_scc1 {lbl}_noxt")
                    a(f"s_lshl_b32 s{sT0}, s{sG}, 7"); a(f"s_lshr_b32 s{sT1}, s2, 3"); a(f"s_lshl_b32 s{sT1}, s{sT1}, 2"); a(f"s_add_u32 s{sT0}, s{sT0}, s{sT1}"); a(f"s_add_u32 s{sT0}, s{sT0}, {WS_XT}")
                    a(f"v_mov_b32 v{vT}, s{sT0}"); a(f"v_mov_b32 v{vT+1}, s{sXcc}")
                    a("s_mov_b64 exec, 1")
                    a(f"buffer_store_dword v{vT+1}, v{vT}, s[{sWS}:{sWS+3}], 0 offen sc1")
                    a("s_mov_b64 exec, -1")
                    a.label(f"{lbl}_noxt")
                if i == self.xt_at:
                    a(f"v_and_b32 v{vT}, 31, v{vLane}"); a(f"v_lshlrev_b32 v{vT}, 2, v{vT}"); a(f"s_lshl_b32 s{sT0}, s{sG}, 7"); a(f"s_add_u32 s{sT0}, s{sT0}, {WS_XT}")
                    a(f"buffer_load_dword v{vXt}, v{vT}, s[{sWS}:{sWS+3}], s{sT0} offen sc1")
                for s in range(4):
                    buf = s % 2
                    if s < 3:
                        reads(i, s + 1, 1 - buf); a("s_waitcnt lgkmcnt(6)")
                    else:
                        a("s_waitcnt lgkmcnt(0)")
                        if i < 7:
                            a("s_barrier")
                            reads(i + 1, 0, 0)
                    for nb in range(2):
                        for sub in range(2):
                            acc = vAcc[nb*2 + sub]
                            if vtype: a(f"v_mfma_f32_32x32x16_bf16 {vr(acc,16)}, {vr(vXf[buf][sub],4)}, {vr(vWf[buf][nb],4)}, {vr(acc,16)}")
                            else: a(f"v_mfma_f32_32x32x16_bf16 {vr(acc,16)}, {vr(vWf[buf][nb],4)}, {vr(vXf[buf][sub],4)}, {vr(acc,16)}")
            a("s_waitcnt vmcnt(0)")
            a(f"v_cmp_eq_u32 s[66:67], s{sXcc}, v{vXt}")
        def stores(emit):
            lbl = f"{pfx}_st{len(self.a.L)}"
            a("s_nop 4")
            a("s_cmp_eq_u64 s[66:67], -1")
            if self.force_slow: a("s_cmp_eq_u32 s2, -1")
            a(f"s_cbranch_scc1 {lbl}_fast")
            emit(" sc1"); a(f"s_branch {lbl}_done")
            a.label(f"{lbl}_fast"); emit("")
            a.label(f"{lbl}_done")
        a(f"s_cmp_eq_u32 s{sTyp}, 2"); a(f"s_cbranch_scc1 {pfx}_vt")
        a(f"v_and_b32 v{vT}, 31, v{vLane}"); a(f"v_and_b32 v{vT+1}, 0x13, v{vT}")
        a(f"v_bfe_u32 v{vT+2}, v{vT}, 2, 1"); a(f"v_lshl_or_b32 v{vT+1}, v{vT+2}, 3, v{vT+1}")
        a(f"v_bfe_u32 v{vT+2}, v{vT}, 3, 1"); a(f"v_lshl_or_b32 v{vT+1}, v{vT+2}, 2, v{vT+1}")
        a(f"s_cmp_eq_u32 s{sTyp}, 1"); a(f"s_cselect_b64 vcc, -1, 0")
        a(f"v_cndmask_b32 v{vT}, v{vT}, v{vT+1}, vcc")
        a(f"v_lshrrev_b32 v{vT+1}, 5, v{vLane}"); a(f"v_lshlrev_b32 v{vT+1}, 9, v{vT+1}"); a(f"v_lshl_add_u32 v{vSt}, v{vT}, 4, v{vT+1}")
        a(f"s_mov_b32 s{sT2}, {WS_Q}"); a(f"s_cselect_b32 s{sT2}, {WS_K}, s{sT2}")
        a(f"s_mov_b32 s54, {fhex(QSCALE)}"); a(f"s_cselect_b32 s54, 1.0, s54"); a("s_mov_b32 s55, s54")
        a(f"s_add_u32 s52, s52, s{sT2}")
        comp_loop(False, f"{pfx}_q")
        a.c("---- epilogue Q/K")
        a("s_nop 3")
        for nb in range(2):
            for sub in range(2):
                acc = vAcc[nb*2 + sub]
                for i in range(8): a(f"v_pk_mul_f32 v[{acc+2*i}:{acc+2*i+1}], v[{acc+2*i}:{acc+2*i+1}], s[54:55]")
                for hd in range(2):
                    d = 24 + 4 * ((nb*4 + sub*2 + hd) % 8)
                    for i in range(4): a(f"v_cvt_pk_bf16_f32 v{d+i}, v{acc+8*hd+2*i}, v{acc+8*hd+2*i+1}")
        def emit_qk(sc):
            for nb in range(2):
                for sub in range(2):
                    for hd in range(2):
                        d = 24 + 4 * ((nb*4 + sub*2 + hd) % 8)
                        a(f"s_add_u32 s{sT1}, s52, {sub*1024 + (nb*2 + hd)*65536}")
                        a(f"buffer_store_dwordx4 {vr(d,4)}, v{vSt}, s[{sWS}:{sWS+3}], s{sT1} offen{sc}")
        stores(emit_qk)
        a(f"s_branch {pfx}_end")
        a.label(f"{pfx}_vt")
        a(f"s_add_u32 s52, s52, {WS_V}")
        a(f"v_bfe_u32 v{vT}, v{vLane}, 4, 1"); a(f"v_lshlrev_b32 v{vT}, 16, v{vT}")
        a(f"v_lshrrev_b32 v{vT+1}, 5, v{vLane}"); a(f"v_lshl_add_u32 v{vT}, v{vT+1}, 8, v{vT}")
        a(f"v_and_b32 v{vT+1}, 15, v{vLane}"); a(f"v_lshl_add_u32 v{vSt}, v{vT+1}, 4, v{vT}")
        comp_loop(True, f"{pfx}_v")
        a.c("---- epilogue V")
        a("s_nop 7")
        for nb in range(2):
            for sub in range(2):
                acc = vAcc[nb*2 + sub]
                for g in range(2):
                    d = 24 + 4 * ((nb*4 + sub*2 + g) % 8)
                    for i in range(4): a(f"v_cvt_pk_bf16_f32 v{d+i}, v{acc+8*g+2*i}, v{acc+8*g+2*i+1}")
        def emit_v(sc):
            for nb in range(2):
                for sub in range(2):
                    for g in range(2):
                        d = 24 + 4 * ((nb*4 + sub*2 + g) % 8)
                        a(f"s_add_u32 s{sT1}, s52, {sub*1024 + g*512 + nb*2*65536}")
                        a(f"buffer_store_dwordx4 {vr(d,4)}, v{vSt}, s[{sWS}:{sWS+3}], s{sT1} offen{sc}")
        stores(emit_v)
        a.label(f"{pfx}_end")
        self.st("p_stores")
        a.c("---- publish: all stores drained in every wave, barrier, flag stores")
        a("s_waitcnt vmcnt(0)")
        a(f"s_cmp_lt_u32 s{sW}, 4"); a(f"s_cbranch_scc1 {pfx}_havetok")
        a(f"v_readfirstlane_b32 s{sTok}, v{vTok}")
        a("s_nop 1")
        a(f"s_add_u32 s{sTok}, s{sTok}, {TOKC:#x}")
        a.label(f"{pfx}_havetok")
        self.st("p_wdrain")
        a("s_barrier")
        self.st("p_drained")
        a(f"s_cmp_lg_u32 s{sW}, 0"); a(f"s_cbranch_scc1 {pfx}_noflag")
        a(f"s_lshl_b32 s{sT0}, s{sG}, 7"); a(f"s_lshr_b32 s{sT1}, s2, 3"); a(f"s_lshl_b32 s{sT1}, s{sT1}, 2"); a(f"s_add_u32 s{sT0}, s{sT0}, s{sT1}"); a(f"s_add_u32 s{sT0}, s{sT0}, {WS_F1}")
        a(f"s_sub_u32 s{sT1}, s{sKind}, 1"); a(f"s_lshl_b32 s{sT1}, s{sT1}, 10"); a(f"s_lshl_b32 s{sT2}, s{sR}, 2"); a(f"s_add_u32 s{sT1}, s{sT1}, s{sT2}"); a(f"s_add_u32 s{sT1}, s{sT1}, {WS_FX - 128}")
        a(f"v_lshlrev_b32 v{vT}, 7, v{vLane}"); a(f"v_add_u32 v{vT}, s{sT1}, v{vT}")
        a(f"v_mov_b32 v{vT+2}, s{sT0}"); a(f"v_cmp_eq_u32 vcc, 0, v{vLane}"); a("s_nop 1"); a(f"v_cndmask_b32 v{vT}, v{vT}, v{vT+2}, vcc")
        a(f"v_mov_b32 v{vT+1}, s{sTok}")
        a(f"s_cmp_eq_u32 s{sKind}, 0"); a("s_mov_b64 exec, 0x1ff"); a(f"s_cbranch_scc0 {pfx}_fl9"); a("s_mov_b64 exec, 1")
        a.label(f"{pfx}_fl9")
        a(f"buffer_store_dword v{vT+1}, v{vT}, s[{sWS}:{sWS+3}], 0 offen sc1")
        a("s_mov_b64 exec, -1")
        a.label(f"{pfx}_noflag")

    def attn(self):
        a = self.a; pfx = "AT"; NQ, NW, U = 2, 8, self.U
        r = 2
        def alloc(n, al=1):
            nonlocal r
            r = (r + al - 1) // al * al; b = r; r += n; return b
        vLane16 = 1
        vQ = [alloc(4, 2) for _ in range(NQ)]; vNM = [alloc(16, 2) for _ in range(NQ)]; vO = [alloc(16, 2) for _ in range(NQ)]
        vX = alloc(16, 2); vY = alloc(16, 2)
        vK = alloc(4, 2); VA = [alloc(4, 2), alloc(4, 2)]; VB = [alloc(4, 2), alloc(4, 2)]
        vIdx = alloc(1); vAk = alloc(1); vAv0 = alloc(1); vAv1 = alloc(1); vT = alloc(4, 2)
        sHead, sQb, sKV, sSrc, sLds, sStep, sLStep, sQoff, sIt, sFlag, sT0, sT1, sOoff, sSync = 20, 21, 22, 23, 24, 25, 26, 27, 28, 29, 30, 31, 32, 33
        self.at = dict(sHead=sHead, sQb=sQb)
        a.c("================ phase 2: attention")
        a(f"v_mbcnt_lo_u32_b32 v{vLane16}, -1, 0"); a(f"v_mbcnt_hi_u32_b32 v{vLane16}, -1, v{vLane16}")
        a(f"s_and_b32 s{sT0}, s2, 7"); a(f"s_lshr_b32 s{sT1}, s2, 3")
        a(f"s_and_b32 s{sQb}, s{sT1}, 3"); a(f"s_lshr_b32 s{sT1}, s{sT1}, 2")
        a(f"s_lshl_b32 s{sT0}, s{sT0}, 2"); a(f"s_and_b32 s{sHead}, s{sT1}, 3"); a(f"s_add_u32 s{sHead}, s{sHead}, s{sT0}")
        a(f"s_cmp_ge_u32 s{sT1}, 4"); a(f"s_cselect_b32 s{sKV}, 32, s{sHead}"); a(f"s_cselect_b32 s{sT0}, 32, 0"); a(f"s_add_u32 s{sHead}, s{sHead}, s{sT0}")
        a(f"s_cmp_lg_u32 s{sW}, 0"); a(f"s_cbranch_scc1 {pfx}_nopoll")
        a(f"s_and_b32 s15, s2, 7"); a(f"s_lshl_b32 s15, s15, 7")
        a(f"v_and_b32 v{vT}, 31, v{vLane16}"); a(f"v_lshlrev_b32 v{vT+1}, 2, v{vT}"); a(f"s_add_u32 s16, s15, {WS_F1}"); a(f"v_add_u32 v{vT+1}, s16, v{vT+1}")
        a(f"s_cmp_ge_u32 s{sHead}, 32"); a(f"s_cbranch_scc0 {pfx}_pa")
        a(f"v_and_b32 v{vT+2}, 15, v{vLane16}"); a(f"v_lshlrev_b32 v{vT+2}, 2, v{vT+2}")
        a(f"v_bfe_u32 v{vT}, v{vLane16}, 4, 1"); a(f"v_lshl_add_u32 v{vT+2}, v{vT}, 10, v{vT+2}")
        a(f"s_add_u32 s16, s15, {WS_FX}"); a(f"v_add_u32 v{vT+2}, s16, v{vT+2}")
        a(f"v_cmp_le_u32 vcc, 32, v{vLane16}"); a("s_nop 1"); a(f"v_cndmask_b32 v{vT+1}, v{vT+1}, v{vT+2}, vcc")
        a.label(f"{pfx}_pa")
        if self.stamp: self.st_at("ps", 30)
        self.poll(f"{pfx}_poll", vT+1, 1, vT+2)
        if self.stamp: a("v_writelane_b32 v255, s14, 31")
        a.label(f"{pfx}_nopoll")
        a(f"v_and_b32 v{vT+1}, 31, v{vLane16}"); a(f"v_lshrrev_b32 v{vT+2}, 5, v{vLane16}"); a(f"v_lshlrev_b32 v{vAk}, 4, v{vLane16}")
        a(f"v_lshlrev_b32 v{vAv0}, 4, v{vT+1}")
        a(f"v_lshl_add_u32 v{vAv0}, v{vT+2}, 8, v{vAv0}")
        a(f"v_add_u32 v{vAv1}, 512, v{vAv0}")
        a(f"v_mov_b32 v{vT+3}, 1024"); a(f"v_cmp_eq_u32 vcc, 16, v{vT+1}"); a("s_nop 1")
        a(f"v_cndmask_b32 v{vAv0}, v{vAv0}, v{vT+3}, vcc"); a(f"v_cndmask_b32 v{vAv1}, v{vAv1}, v{vT+3}, vcc")
        a(f"v_mov_b32 v{vT+3}, 0x30000"); a(f"v_cmp_lt_u32 vcc, 16, v{vT+1}"); a("s_nop 1")
        a(f"v_cndmask_b32 v{vAv0}, v{vAv0}, v{vT+3}, vcc"); a(f"v_cndmask_b32 v{vAv1}, v{vAv1}, v{vT+3}, vcc")
        a(f"v_add_u32 v{vAv0}, {LDS_V}, v{vAv0}"); a(f"v_add_u32 v{vAv1}, {LDS_V}, v{vAv1}")
        a(f"v_mov_b32 v{vLane16}, v{vAk}")
        a(f"s_lshl_b32 s{sQoff}, s{sHead}, 16"); a(f"s_lshl_b32 s{sT0}, s{sQb}, 4"); a(f"s_mul_i32 s{sT1}, s{sW}, {NQ}"); a(f"s_add_u32 s{sT0}, s{sT0}, s{sT1}")
        a(f"s_lshl_b32 s{sT1}, s{sT0}, 10"); a(f"s_add_u32 s{sQoff}, s{sQoff}, s{sT1}"); a(f"s_add_u32 s{sOoff}, s{sQoff}, {WS_O - WS_Q}")
        a(f"s_lshl_b32 s{sT0}, s{sKV}, 16"); a(f"s_lshl_b32 s{sT1}, s{sW}, 10")
        a(f"s_add_u32 s{sSrc}, s{sT0}, s{sT1}"); a(f"s_add_u32 s{sStep}, s{sSrc}, {WS_V}"); a(f"s_add_u32 s{sSrc}, s{sSrc}, {WS_K}")
        a(f"s_mov_b32 s{sLds}, s{sT1}"); a(f"s_mul_i32 s{sLStep}, s{sW}, {VSTRIDE}"); a(f"s_add_u32 s{sLStep}, s{sLStep}, {LDS_V}")
        a(f"s_cmp_lg_u32 s{sW}, 1"); a(f"s_cbranch_scc1 {pfx}_noones")
        a(f"v_lshrrev_b32 v{vT}, 4, v{vLane16}"); a(f"v_mul_u32_u24 v{vT}, {VSTRIDE}, v{vT}"); a(f"v_add_u32 v{vT}, {LDS_V + 1024}, v{vT}")
        for i in range(4): a(f"v_mov_b32 v{vX+i}, 0x3f803f80")
        a(f"ds_write_b128 v{vT}, {vr(vX,4)}")
        a.label(f"{pfx}_noones")
        a(f"v_mov_b32 v{vIdx}, 0xdddddddd"); a(f"s_mov_b32 s{sFlag}, 0")
        for q in range(NQ):
            for i in range(16): a(f"v_mov_b32 v{vO[q]+i}, 0")
        a("s_barrier")
        self.st("a_polled")
        for q in range(NQ):
            if q: a(f"s_add_u32 s{sT1}, s{sQoff}, {1024*q}")
            a(f"buffer_load_dwordx4 {vr(vQ[q],4)}, v{vLane16}, s[{sWS}:{sWS+3}], s{sT1 if q else sQoff} offen{self.kvsc}")
        def kv_chunk():
            a(f"s_mov_b32 m0, s{sLds}"); a(f"s_add_u32 s{sLds}, s{sLds}, 8192")
            a(f"buffer_load_dwordx4 v{vLane16}, s[{sWS}:{sWS+3}], s{sSrc} offen{self.kvsc} lds"); a(f"s_add_u32 s{sSrc}, s{sSrc}, 8192")
            a(f"s_mov_b32 m0, s{sLStep}"); a(f"s_add_u32 s{sLStep}, s{sLStep}, {8*VSTRIDE}")
            a(f"buffer_load_dwordx4 v{vLane16}, s[{sWS}:{sWS+3}], s{sStep} offen{self.kvsc} lds"); a(f"s_add_u32 s{sStep}, s{sStep}, 8192")
        kv_chunk()
        a(f"s_waitcnt vmcnt(0) lgkmcnt(0)")
        a("s_barrier")
        a(f"s_cmp_lt_u32 s{sW}, 4"); a(f"s_cbranch_scc1 {pfx}_nodma")
        a(f"s_sub_u32 s{sSrc}, s{sSrc}, 4096"); a(f"s_sub_u32 s{sStep}, s{sStep}, 4096")
        a(f"s_sub_u32 s{sLds}, s{sLds}, 4096"); a(f"s_sub_u32 s{sLStep}, s{sLStep}, {4*VSTRIDE}")
        for c in range(1, 8):
            for hf in range(2):
                a(f"s_mov_b32 m0, s{sLds}"); a(f"s_add_u32 s{sLds}, s{sLds}, 4096")
                a(f"buffer_load_dwordx4 v{vLane16}, s[{sWS}:{sWS+3}], s{sSrc} offen{self.kvsc} lds"); a(f"s_add_u32 s{sSrc}, s{sSrc}, 4096")
                a(f"s_mov_b32 m0, s{sLStep}"); a(f"s_add_u32 s{sLStep}, s{sLStep}, {4*VSTRIDE}")
                a(f"buffer_load_dwordx4 v{vLane16}, s[{sWS}:{sWS+3}], s{sStep} offen{self.kvsc} lds"); a(f"s_add_u32 s{sStep}, s{sStep}, 4096")
        a.label(f"{pfx}_nodma")
        a(f"s_mov_b32 s{sSync}, 1")
        self.st("a_chunk0")
        a.c("---- stand-in for the row max: max over key tile 0 (checked after the loop, exact fallback below)")
        a(f"ds_read_b128 {vr(vK,4)}, v{vAk}"); a("s_waitcnt lgkmcnt(0)")
        bufs = [vX, vY]
        for q in range(NQ): a(f"v_mfma_f32_32x32x16_bf16 {vr(bufs[q],16)}, {vr(vK,4)}, {vr(vQ[q],4)}, 0")
        a("s_nop 7"); a("s_nop 3")
        for q in range(NQ):
            S = bufs[q]
            a(f"v_max3_f32 v{vT}, v{S}, v{S+1}, v{S+2}"); a(f"v_max3_f32 v{vT+1}, v{S+3}, v{S+4}, v{S+5}")
            a(f"v_max3_f32 v{vT}, v{vT}, v{S+6}, v{S+7}"); a(f"v_max3_f32 v{vT+1}, v{vT+1}, v{S+8}, v{S+9}")
            a(f"v_max3_f32 v{vT}, v{vT}, v{S+10}, v{S+11}"); a(f"v_max3_f32 v{vT+1}, v{vT+1}, v{S+12}, v{S+13}")
            a(f"v_max3_f32 v{vT}, v{vT}, v{S+14}, v{S+15}"); a(f"v_max_f32 v{vT}, v{vT}, v{vT+1}")
            a(f"v_mov_b32 v{vT+1}, v{vT}"); a("s_nop 1"); a(f"v_permlane32_swap_b32 v{vT}, v{vT+1}"); a("s_nop 1")
            a(f"v_max_f32 v{vT}, v{vT}, v{vT+1}"); a(f"v_add_f32 v{vT}, {fhex(self.bias)}, v{vT}"); a(f"v_sub_f32 v{vNM[q]}, 0, v{vT}")
            for i in range(1, 16): a(f"v_mov_b32 v{vNM[q]+i}, v{vNM[q]}")
        a.label(f"{pfx}_run")
        a(f"ds_read_b128 {vr(vK,4)}, v{vAk}"); a(f"ds_read_b128 {vr(VA[0],4)}, v{vAv0}"); a(f"ds_read_b128 {vr(VB[0],4)}, v{vAv1}")
        for i in range(8): a(f"v_mov_b32 v{vY+8+i}, 0")
        for i in range(4): a(f"v_mov_b32 v{VB[1]+i}, 0")
        a("s_waitcnt lgkmcnt(0)")
        a(f"v_mfma_f32_32x32x16_bf16 {vr(vX,16)}, {vr(vK,4)}, {vr(vQ[0],4)}, {vr(vNM[0],16)}")
        a(f"s_mov_b32 s{sIt}, 0")
        if self.psw is not None:
            a(f"s_cmp_ge_u32 s{sW}, {NW//2}"); a(f"s_cbranch_scc1 {pfx}_p1")
            a("s_setprio 2"); a(f"s_branch {pfx}_p2")
            a.label(f"{pfx}_p1"); a("s_setprio 1"); a.label(f"{pfx}_p2")
        a("s_nop 7"); a("s_nop 3")
        self.st("a_loop")
        a(".p2align 3")
        a.label(f"{pfx}_loop")
        p1, p2, p3 = self.sched
        def slot(S, Sp, q, qp, qn, qk_wait, after_qk, rVa, rVb):
            ex = [f"v_exp_f32 v{S+i}, v{S+i}" for i in range(16)]
            for i in range(0, p1): a(ex[i])
            a(f"v_smfmac_f32_32x32x32_bf16 {vr(vO[qp],16)}, {vr(rVb,4)}, {vr(Sp+8,8)}, v{vIdx}")
            for i in range(p1, p2): a(ex[i])
            if qk_wait is not None: a(f"s_waitcnt lgkmcnt({qk_wait})")
            a(f"v_mfma_f32_32x32x16_bf16 {vr(Sp,16)}, {vr(vK,4)}, {vr(vQ[qn],4)}, {vr(vNM[qn],16)}")
            for s in after_qk: a(s)
            for i in range(p2, p3): a(ex[i])
            a(f"v_smfmac_f32_32x32x32_bf16 {vr(vO[q],16)}, {vr(rVa,4)}, {vr(S,8)}, v{vIdx}")
            for i in range(p3, 16): a(ex[i])
        for t in range(U):
            rk = f"ds_read_b128 {vr(vK,4)}, v{vAk} offset:{(t+1)*1024}"
            ra = f"ds_read_b128 {vr(VA[(t+1)&1],4)}, v{vAv0} offset:{(t+1)*VSTRIDE}"
            rb = f"ds_read_b128 {vr(VB[(t+1)&1],4)}, v{vAv1} offset:{(t+1)*VSTRIDE}"
            pre = []
            if t == U - 1:
                pre = [f"s_cmp_eq_u32 s{sSync}, 0", f"s_cbranch_scc1 {pfx}_synced", "s_waitcnt vmcnt(0)", "s_barrier", f"s_mov_b32 s{sSync}, 0", f"{pfx}_synced:"]
            slot(vX, vY, 0, 1, 1, None, pre + [rk, ra, rb], VA[t&1], VB[(t-1)&1])
            slot(vY, vX, 1, 0, 0, 0, [], VA[t&1], VB[t&1])
        a(f"v_add_u32 v{vAk}, {U*1024}, v{vAk}"); a(f"v_add_u32 v{vAv0}, {U*VSTRIDE}, v{vAv0}"); a(f"v_add_u32 v{vAv1}, {U*VSTRIDE}, v{vAv1}")
        a(f"s_add_u32 s{sIt}, s{sIt}, 1"); a(f"s_cmp_eq_u32 s{sIt}, {64//U}"); a(f"s_cbranch_scc1 {pfx}_done")
        if self.psw is not None:
            a(f"s_cmp_eq_u32 s{sIt}, {self.psw}"); a(f"s_cbranch_scc0 {pfx}_nosw")
            a(f"s_cmp_lt_u32 s{sW}, {NW//2}"); a(f"s_cbranch_scc0 {pfx}_nosw")
            a("s_setprio 0")
            if self.wopf:
                a(f"s_lshr_b32 s34, s2, 3"); a(f"s_cmp_ge_u32 s34, 16")
                a(f"s_cselect_b32 s36, s62, s60"); a(f"s_cselect_b32 s37, s63, s61"); a(f"s_and_b32 s37, s37, 0xffff")
                a(f"s_mov_b32 s38, {512*1024}"); a(f"s_mov_b32 s39, 0x00020000")
                a(f"s_and_b32 s34, s34, 15"); a(f"s_lshl_b32 s34, s34, 15"); a(f"s_lshl_b32 s35, s{sW}, 13"); a(f"s_add_u32 s34, s34, s35")
                a(f"s_mov_b32 m0, {134144}")
                for i in range(8):
                    a(f"buffer_load_dwordx4 v{vLane16}, s[36:39], s34 offen lds"); a(f"s_add_u32 s34, s34, 1024")
            a.label(f"{pfx}_nosw")
        a(f"s_branch {pfx}_loop")
        a.label(f"{pfx}_done")
        a("s_setprio 0")
        self.st("a_loopend")
        a("s_waitcnt lgkmcnt(0)"); a("s_nop 1")
        a(f"v_smfmac_f32_32x32x32_bf16 {vr(vO[1],16)}, {vr(VB[1],4)}, {vr(vY+8,8)}, v{vIdx}")
        a(f"v_subrev_u32 v{vAk}, {64*1024}, v{vAk}"); a(f"v_subrev_u32 v{vAv0}, {64*VSTRIDE}, v{vAv0}"); a(f"v_subrev_u32 v{vAv1}, {64*VSTRIDE}, v{vAv1}")
        a("s_nop 7"); a("s_nop 3")
        a.c("---- was the stand-in safe?  (l and |O| finite and far from overflow / underflow)")
        a(f"s_cmp_lg_u32 s{sFlag}, 0"); a(f"s_cbranch_scc1 {pfx}_store")
        a("s_mov_b64 s[16:17], -1"); a(f"s_mov_b32 s{sT0}, {fhex(2.0**100)}"); a(f"s_mov_b32 s{sT1}, {fhex(2.0**-110)}")
        for q in range(NQ):
            O = vO[q]
            a(f"v_max3_f32 v{vT}, abs(v{O}), abs(v{O+1}), abs(v{O+2})"); a(f"v_max3_f32 v{vT}, abs(v{O+3}), abs(v{O+4}), v{vT}")
            a(f"v_max3_f32 v{vT}, abs(v{O+5}), abs(v{O+6}), v{vT}")
            a(f"v_add_f32 v{vT+1}, v{O}, v{O+1}"); a(f"v_add_f32 v{vT+2}, v{O+2}, v{O+3}"); a(f"v_add_f32 v{vT+3}, v{O+4}, v{O+5}")
            a(f"v_add_f32 v{vT+1}, v{vT+1}, v{vT+2}"); a(f"v_add_f32 v{vT+2}, v{O+6}, v{O+7}"); a(f"v_add_f32 v{vT+1}, v{vT+1}, v{vT+3}")
            a(f"v_max_f32 v{vT}, abs(v{O+7}), v{vT}"); a(f"v_add_f32 v{vT+1}, v{vT+1}, v{vT+2}")
            a(f"v_cmp_gt_f32 vcc, s{sT0}, v{vT}"); a("s_and_b64 s[16:17], s[16:17], vcc")
            a(f"v_cmp_lt_f32 vcc, s{sT1}, v{vT}"); a("s_and_b64 s[16:17], s[16:17], vcc")
            a(f"v_cmp_o_f32 vcc, v{vT+1}, v{vT+1}"); a("s_and_b64 s[16:17], s[16:17], vcc")
            a(f"v_mov_b32 v{vT}, v{O+8}"); a(f"v_mov_b32 v{vT+1}, v{O+8}"); a("s_nop 1")
            a(f"v_permlane32_swap_b32 v{vT}, v{vT+1}"); a("s_nop 1")
            a(f"v_cmp_gt_f32 vcc, s{sT0}, v{vT}"); a("s_and_b64 s[16:17], s[16:17], vcc")
        a("s_cmp_eq_u64 s[16:17], -1"); a(f"s_cbranch_scc1 {pfx}_store")
        a.c("---- fallback: true row max over all keys, then redo the pass")
        a(f"s_mov_b32 s{sFlag}, 1")
        for q in range(NQ): a(f"v_mov_b32 v{vNM[q]}, 0xff800000")
        a(f"s_mov_b32 s{sIt}, 0")
        a.label(f"{pfx}_fb_loop")
        a(f"ds_read_b128 {vr(vK,4)}, v{vAk}"); a("s_waitcnt lgkmcnt(0)")
        for q in range(NQ): a(f"v_mfma_f32_32x32x16_bf16 {vr(bufs[q],16)}, {vr(vK,4)}, {vr(vQ[q],4)}, 0")
        a("s_nop 7"); a("s_nop 7")
        for q in range(NQ):
            S = bufs[q]
            for i in range(0, 16, 2): a(f"v_max3_f32 v{vNM[q]}, v{vNM[q]}, v{S+i}, v{S+i+1}")
        a(f"v_add_u32 v{vAk}, 1024, v{vAk}")
        a(f"s_add_u32 s{sIt}, s{sIt}, 1"); a(f"s_cmp_lt_u32 s{sIt}, 64"); a(f"s_cbranch_scc1 {pfx}_fb_loop")
        a(f"v_subrev_u32 v{vAk}, {64*1024}, v{vAk}")
        for q in range(NQ):
            a(f"v_mov_b32 v{vT+1}, v{vNM[q]}"); a(f"v_mov_b32 v{vT}, v{vNM[q]}"); a("s_nop 1")
            a(f"v_permlane32_swap_b32 v{vT}, v{vT+1}"); a("s_nop 1")
            a(f"v_max_f32 v{vT}, v{vT}, v{vT+1}"); a(f"v_sub_f32 v{vNM[q]}, 0, v{vT}")
            for i in range(1, 16): a(f"v_mov_b32 v{vNM[q]+i}, v{vNM[q]}")
            for i in range(16): a(f"v_mov_b32 v{vO[q]+i}, 0")
        a(f"s_branch {pfx}_run")
        a.label(f"{pfx}_store")
        a.c("---- normalise and store o (fragment order)")
        for q in range(NQ):
            O = vO[q]
            a(f"v_mov_b32 v{vT}, v{O+8}"); a(f"v_mov_b32 v{vT+1}, v{O+8}"); a("s_nop 1")
            a(f"v_permlane32_swap_b32 v{vT}, v{vT+1}"); a("s_nop 1")
            a(f"v_rcp_f32 v{vT}, v{vT}"); a("s_nop 0")
            for i in range(8): a(f"v_mul_f32 v{O+i}, v{O+i}, v{vT}")
            for i in range(4): a(f"v_cvt_pk_bf16_f32 v{vX+4*q+i}, v{O+2*i}, v{O+2*i+1}")
            if q: a(f"s_add_u32 s{sOoff}, s{sOoff}, 1024")
            a(f"buffer_store_dwordx4 {vr(vX+4*q,4)}, v{vLane16}, s[{sWS}:{sWS+3}], s{sOoff} offen{self.sc}")
        self.st("a_stored")

    def outp(self):
        a = self.a; pfx = "OP"
        sWA, sWB, sOut = 16, 20, 24
        sHead, sQb = self.at["sHead"], self.at["sQb"]
        sH2, sQ2, sR, sC, sT0, sT1, sT2, sOsrc, sWsrc, sLds = 40, 41, 42, 43, 44, 45, 46, 47, 48, 49
        vLane, vL16, vWo, vOa, vT, vG, vPa = 1, 2, 3, 4, 6, 10, 11
        vOf = [12, 16]; vAcc = 24; vP = 40; vWf = 64
        a.c("================ phase 3: output projection")
        a(f"s_mov_b32 s{sH2}, s{sHead}"); a(f"s_mov_b32 s{sQ2}, s{sQb}")
        a(f"v_mbcnt_lo_u32_b32 v{vLane}, -1, 0"); a(f"v_mbcnt_hi_u32_b32 v{vLane}, -1, v{vLane}")
        a(f"s_and_b32 s{sT0}, s2, 7"); a(f"s_lshr_b32 s{sT1}, s2, 3")
        a(f"s_lshl_b32 s{sR}, s{sT0}, 2"); a(f"s_and_b32 s{sT2}, s{sT1}, 3"); a(f"s_add_u32 s{sR}, s{sR}, s{sT2}")
        a(f"s_lshr_b32 s{sC}, s{sT1}, 2")
        a(f"v_lshlrev_b32 v{vL16}, 4, v{vLane}")
        a(f"v_lshrrev_b32 v{vT}, 5, v{vLane}"); a(f"v_lshlrev_b32 v{vT}, 2, v{vT}")
        a(f"v_bfe_u32 v{vT+1}, v{vLane}, 2, 2"); a(f"v_add_u32 v{vT}, v{vT}, v{vT+1}"); a(f"v_lshlrev_b32 v{vT}, 10, v{vT}")
        a(f"v_bfe_u32 v{vT+1}, v{vLane}, 4, 1"); a(f"v_lshl_add_u32 v{vT}, v{vT+1}, 6, v{vT}")
        a(f"v_and_b32 v{vT+1}, 3, v{vLane}"); a(f"v_lshl_add_u32 v{vWo}, v{vT+1}, 4, v{vT}")
        srd(a, sWA, 60, 512*1024); srd(a, sWB, 62, 512*1024); srd(a, sOut, 64, 2048*1024)
        a(f"s_lshl_b32 s{sWsrc}, s{sW}, 14"); a(f"s_lshl_b32 s{sT0}, s{sC}, 7"); a(f"s_add_u32 s{sWsrc}, s{sWsrc}, s{sT0}")
        a(f"s_lshl_b32 s{sLds}, s{sW}, 11")
        a.c("all waves are done with the K/V image in LDS -> the W tile (64 heads x 2 KB, L2-warm) streams in")
        a("s_barrier")
        for j in range(8):
            Wsrd = sWA if j < 4 else sWB
            a(f"s_add_u32 s{sT0}, s{sLds}, {j*8*2048}"); a(f"s_mov_b32 m0, s{sT0}")
            a(f"s_add_u32 s{sT1}, s{sWsrc}, {(j % 4)*8*16384}")
            a(f"buffer_load_dwordx4 v{vWo}, s[{Wsrd}:{Wsrd+3}], s{sT1} offen lds")
            a(f"s_add_u32 s{sT0}, s{sT0}, 1024"); a(f"s_mov_b32 m0, s{sT0}"); a(f"s_add_u32 s{sT1}, s{sT1}, 8192")
            a(f"buffer_load_dwordx4 v{vWo}, s[{Wsrd}:{Wsrd+3}], s{sT1} offen lds")
        a.c("o stores (older than the 16 DMA) drained in every wave -> flag")
        a("s_waitcnt vmcnt(16)")
        a("s_barrier")
        self.st("o_drained")
        a(f"s_cmp_lg_u32 s{sW}, 0"); a(f"s_cbranch_scc1 {pfx}_noflag")
        a(f"s_lshl_b32 s{sT0}, s{sQ2}, 2"); a(f"s_lshr_b32 s{sT1}, s{sH2}, 4"); a(f"s_add_u32 s{sT0}, s{sT0}, s{sT1}"); a(f"s_lshl_b32 s{sT0}, s{sT0}, 7")
        a(f"s_and_b32 s{sT1}, s{sH2}, 15"); a(f"s_lshl_b32 s{sT1}, s{sT1}, 2"); a(f"s_add_u32 s{sT0}, s{sT0}, s{sT1}"); a(f"s_add_u32 s{sT0}, s{sT0}, {WS_F2}")
        a(f"v_mov_b32 v{vT}, s{sT0}"); a(f"v_mov_b32 v{vT+1}, s{sTok}")
        a("s_mov_b64 exec, 1")
        a(f"buffer_store_dword v{vT+1}, v{vT}, s[{sWS}:{sWS+3}], 0 offen sc1")
        a("s_mov_b64 exec, -1")
        a(f"s_lshr_b32 s{sT0}, s{sR}, 3"); a(f"s_lshl_b32 s{sT0}, s{sT0}, 9"); a(f"s_add_u32 s{sT0}, s{sT0}, {WS_F2}")
        a(f"v_lshrrev_b32 v{vT}, 3, v{vLane}"); a(f"v_lshlrev_b32 v{vT+1}, 7, v{vT}"); a(f"v_add_u32 v{vT+1}, s{sT0}, v{vT+1}")
        a(f"s_and_b32 s{sT1}, s2, 7"); a(f"s_lshl_b32 s{sT1}, s{sT1}, 7"); a(f"s_add_u32 s{sT1}, s{sT1}, {WS_FX + 2*1024}")
        a(f"v_mov_b32 v{vT+2}, s{sT1}"); a(f"v_cmp_le_u32 vcc, 4, v{vT}"); a("s_nop 1"); a(f"v_cndmask_b32 v{vT+1}, v{vT+1}, v{vT+2}, vcc")
        a(f"v_and_b32 v{vT}, 7, v{vLane}"); a(f"v_lshl_add_u32 v{vPa}, v{vT}, 3, v{vT+1}")
        a.label(f"{pfx}_noflag")
        a(f"v_lshrrev_b32 v{vT}, 5, v{vLane}"); a(f"v_lshlrev_b32 v{vT}, 9, v{vT}")
        a(f"v_bfe_u32 v{vT+1}, v{vLane}, 2, 2"); a(f"v_lshl_add_u32 v{vT}, v{vT+1}, 6, v{vT}")
        a(f"v_bfe_u32 v{vT+1}, v{vLane}, 4, 1"); a(f"v_lshl_add_u32 v{vT}, v{vT+1}, 5, v{vT}")
        a(f"v_and_b32 v{vT+1}, 3, v{vLane}"); a(f"v_lshl_add_u32 v{vT}, v{vT+1}, 3, v{vT}")
        a(f"s_lshr_b32 s{sT0}, s{sW}, 2"); a(f"s_lshl_b32 s{sT0}, s{sT0}, 16")
        a(f"s_bfe_u32 s{sT1}, s{sW}, 0x10001"); a(f"s_lshl_b32 s{sT1}, s{sT1}, 8"); a(f"s_add_u32 s{sT0}, s{sT0}, s{sT1}")
        a(f"v_add_u32 v{vT}, s{sT0}, v{vT}")
        a(f"s_lshr_b32 s{sT0}, s{sW}, 2"); a(f"s_lshl_b32 s{sT0}, s{sT0}, 16"); a(f"s_and_b32 s{sT1}, s{sW}, 1"); a(f"s_lshl_b32 s{sT1}, s{sT1}, 10"); a(f"s_add_u32 s{sT0}, s{sT0}, s{sT1}")
        a(f"v_add_u32 v{vOa}, s{sT0}, v{vL16}")
        a("s_waitcnt vmcnt(0)")
        a("s_barrier")
        self.st("o_wlanded")
        a(f"s_cmp_lg_u32 s{sW}, 0"); a(f"s_cbranch_scc1 {pfx}_nop1")
        a(f"buffer_load_dwordx2 v[20:21], v{vPa}, s[{sWS}:{sWS+3}], 0 offen sc1")
        a.label(f"{pfx}_nop1")
        for hd in range(32):
            a(f"ds_read_b64_tr_b16 {vr(vWf+4*hd,2)}, v{vT} offset:{hd*2048}")
            a(f"ds_read_b64_tr_b16 {vr(vWf+4*hd+2,2)}, v{vT} offset:{hd*2048 + 1024}")
            if hd % 5 == 4: a("s_waitcnt lgkmcnt(4)")
        for i in range(16): a(f"v_mov_b32 v{vAcc+i}, 0")
        a(f"s_cmp_lg_u32 s{sW}, 0"); a(f"s_cbranch_scc1 {pfx}_polled")
        a("s_waitcnt vmcnt(0)")
        a(f"v_cmp_eq_u32 vcc, s{sTok}, v20"); a(f"v_cmp_eq_u32 s[52:53], s{sTok}, v21"); a("s_nop 1"); a("s_and_b64 vcc, vcc, s[52:53]"); a("s_nop 1")
        a("s_cmp_eq_u64 vcc, -1"); a(f"s_cbranch_scc1 {pfx}_seen")
        self.poll(f"{pfx}_poll", vPa, 2, vT+2, smask=52)
        a.label(f"{pfx}_seen")
        a.c("every workgroup has read the token by now (transitively): advance it for the next launch")
        a("s_cmp_lg_u32 s2, 0"); a(f"s_cbranch_scc1 {pfx}_polled")
        a(f"v_mov_b32 v{vT}, {WS_TOK}"); a(f"v_mov_b32 v{vT+1}, s{sTok}")
        a("s_mov_b64 exec, 1")
        a(f"buffer_store_dword v{vT+1}, v{vT}, s[{sWS}:{sWS+3}], 0 offen sc1")
        a("s_mov_b64 exec, -1")
        a("s_waitcnt vmcnt(0)")
        a.label(f"{pfx}_polled")
        a(f"v_and_b32 v{vT}, 31, v{vLane}"); a(f"v_lshlrev_b32 v{vT}, 2, v{vT}")
        a(f"s_lshl_b32 s{sT2}, s{sR}, 8"); a(f"s_and_b32 s{sT1}, s{sW}, 1"); a(f"s_lshl_b32 s{sT1}, s{sT1}, 7"); a(f"s_add_u32 s{sT2}, s{sT2}, s{sT1}"); a(f"s_add_u32 s{sT2}, s{sT2}, {WS_G}")
        a(f"s_lshl_b32 s{sOsrc}, s{sW}, 16"); a(f"s_lshl_b32 s{sT0}, s{sR}, 11"); a(f"s_add_u32 s{sOsrc}, s{sOsrc}, s{sT0}"); a(f"s_add_u32 s{sOsrc}, s{sOsrc}, {WS_O}")
        a.c("wave 0 has seen every producer flag ; W fragments are in registers -> the W image may be overwritten")
        a("s_waitcnt lgkmcnt(0)")
        a("s_barrier")
        self.st("o_polled")
        def o_chunk(j):
            for half in range(2):
                hb = 8*j + 32*half
                for tile in range(2):
                    a(f"s_add_u32 s{sT0}, s{sLds}, {hb*2048 + tile*1024}"); a(f"s_mov_b32 m0, s{sT0}")
                    a(f"s_add_u32 s{sT1}, s{sOsrc}, {hb*65536 + tile*1024}")
                    a(f"buffer_load_dwordx4 v{vL16}, s[{sWS}:{sWS+3}], s{sT1} offen{self.sc} lds")
        o_chunk(0)
        a(f"buffer_load_dword v{vG}, v{vT}, s[{sWS}:{sWS+3}], s{sT2} offen{self.sc}")
        o_chunk(1)
        for j in range(4):
            a(f"s_waitcnt vmcnt({[5, 4, 4, 0][j]})"); a("s_barrier")
            if j == 0: self.st("o_chunk0")
            if j + 2 < 4: o_chunk(j + 2)
            o0 = 8*j*2048
            a(f"ds_read_b128 {vr(vOf[0],4)}, v{vOa} offset:{o0}")
            for s in range(8):
                buf = s % 2
                if s < 7:
                    a(f"ds_read_b128 {vr(vOf[1-buf],4)}, v{vOa} offset:{o0 + (s+1)*2048}"); a("s_waitcnt lgkmcnt(1)")
                else: a("s_waitcnt lgkmcnt(0)")
                a(f"v_mfma_f32_32x32x16_bf16 {vr(vAcc,16)}, {vr(vWf+4*(8*j+s),4)}, {vr(vOf[buf],4)}, {vr(vAcc,16)}")
        self.st("o_gemm")
        a.c("---- gate, combine the A and B halves through LDS, store")
        a("s_barrier")
        a(f"v_sub_f32 v{vT+2}, 1.0, v{vG}")
        a(f"s_cmp_ge_u32 s{sW}, 4"); a("s_cselect_b64 vcc, -1, 0")
        a(f"v_cndmask_b32 v{vG}, v{vG}, v{vT+2}, vcc")
        a("s_nop 7")
        for i in range(16): a(f"v_mul_f32 v{vAcc+i}, v{vAcc+i}, v{vG}")
        a(f"s_and_b32 s{sT0}, s{sW}, 3"); a(f"s_lshl_b32 s{sT0}, s{sT0}, 12"); a(f"s_lshr_b32 s{sT1}, s{sW}, 2")
        a(f"s_lshl_b32 s{sT2}, s{sT1}, 11"); a(f"s_add_u32 s{sT2}, s{sT2}, s{sT0}")
        a(f"v_add_u32 v{vT}, s{sT2}, v{vL16}"); a(f"s_xor_b32 s{sT2}, s{sT2}, 2048"); a(f"v_add_u32 v{vT+1}, s{sT2}, v{vL16}")
        a(f"s_cmp_eq_u32 s{sT1}, 0"); a(f"s_cbranch_scc0 {pfx}_k1")
        for (keep, give, lbl) in ((0, 8, None), (8, 0, f"{pfx}_k1")):
            if lbl: a.label(lbl)
            a(f"ds_write_b128 v{vT}, {vr(vAcc+give,4)}"); a(f"ds_write_b128 v{vT}, {vr(vAcc+give+4,4)} offset:1024")
            a("s_waitcnt lgkmcnt(0)"); a("s_barrier")
            a(f"ds_read_b128 {vr(vP,4)}, v{vT+1}"); a(f"ds_read_b128 {vr(vP+4,4)}, v{vT+1} offset:1024")
            a("s_waitcnt lgkmcnt(0)")
            for i in range(8): a(f"v_add_f32 v{vP+i}, v{vP+i}, v{vAcc+keep+i}")
            if keep == 0: a(f"s_branch {pfx}_st")
        a.label(f"{pfx}_st")
        for i in range(4): a(f"v_cvt_pk_bf16_f32 v{vOf[0]+i}, v{vP+2*i}, v{vP+2*i+1}")
        a("s_nop 1")
        a(f"v_permlane32_swap_b32 v{vOf[0]}, v{vOf[0]+2}"); a(f"v_permlane32_swap_b32 v{vOf[0]+1}, v{vOf[0]+3}")
        a(f"v_and_b32 v{vT}, 31, v{vLane}"); a(f"v_lshlrev_b32 v{vT}, 10, v{vT}")
        a(f"v_lshrrev_b32 v{vT+1}, 5, v{vLane}"); a(f"v_lshl_add_u32 v{vT}, v{vT+1}, 4, v{vT}")
        a(f"s_lshl_b32 s{sT0}, s{sR}, 16"); a(f"s_and_b32 s{sT1}, s{sW}, 1"); a(f"s_lshl_b32 s{sT1}, s{sT1}, 15"); a(f"s_add_u32 s{sT0}, s{sT0}, s{sT1}")
        a(f"s_lshl_b32 s{sT1}, s{sC}, 7"); a(f"s_add_u32 s{sT0}, s{sT0}, s{sT1}")
        a(f"s_bfe_u32 s{sT1}, s{sW}, 0x10001"); a(f"s_lshl_b32 s{sT1}, s{sT1}, 6"); a(f"s_add_u32 s{sT0}, s{sT0}, s{sT1}")
        a(f"s_lshr_b32 s{sT1}, s{sW}, 2"); a(f"s_lshl_b32 s{sT1}, s{sT1}, 5"); a(f"s_add_u32 s{sT0}, s{sT0}, s{sT1}")
        a(f"buffer_store_dwordx4 {vr(vOf[0],4)}, v{vT}, s[{sOut}:{sOut+3}], s{sT0} offen")
        self.st("o_end")

    def build(self):
        a = self.a; name = NAME + "_kernel"
        a("s_cmp_ge_u32 s2, 256"); a("s_cbranch_scc1 L_exit")
        if self.stamp:
            a("v_mov_b32 v254, 0"); a("v_mov_b32 v255, 0")
        self.st("start")
        self.proj(); self.attn(); self.outp()
        self.st_dump()
        a.label("L_exit"); a("s_endpgm")
        ref = open(f"cdna_kernels/{NAME}.s.ref").read().split("\n")
        hdr = []
        for l in ref:
            if l.startswith("; Override") or not l.startswith(";"): break
            hdr.append(l)
        h = "\n".join(hdr) + f"\n; @launch grid=(256,1,1) block=(512,1,1) lds={LDS_TOTAL}\n" + '.amdgcn_target "amdgcn-amd-amdhsa--gfx950"\n'
        nv = 256 if self.stamp else 192
        return h + kernel_head(name) + a.text() + kernel_desc(name, nv, 102)

if __name__ == "__main__":
    g = Gen(); s = g.build(); open("fused.s", "w").write(s); print(len(s), "bytes")
    g = Gen(stamp=True); s = g.build(); open("fused_st.s", "w").write(s); open("fused_st.names", "w").write(",".join(g.stnames)); print(g.stnames)
    g = Gen(stamp="proj"); s = g.build(); open("fused_stp.s", "w").write(s); open("fused_stp.names", "w").write(",".join(g.stnames))
    g = Gen(stamp="proj", sc1=False); s = g.build(); open("fused_stp_nosc.s", "w").write(s); open("fused_stp_nosc.names", "w").write(",".join(g.stnames))
    g = Gen(stamp="proj", rot=False); s = g.build(); open("fused_stp_norot.s", "w").write(s); open("fused_stp_norot.names", "w").write(",".join(g.stnames))
    g = Gen(stamp=True, rot=False); s = g.build(); open("fused_st_norot.s", "w").write(s); open("fused_st_norot.names", "w").write(",".join(g.stnames))
    g = Gen(force_slow=True); s = g.build(); open("fused_slow.s", "w").write(s)
    g = Gen(stamp=True, force_slow=True); s = g.build(); open("fused_st_slow.s", "w").write(s); open("fused_st_slow.names", "w").write(",".join(g.stnames))
    g = Gen(stamp=True, kvsc=False); s = g.build(); open("fused_st_plain.s", "w").write(s); open("fused_st_plain.names", "w").write(",".join(g.stnames))
    g = Gen(kvsc=False); s = g.build(); open("fused_plain.s", "w").write(s)
    g = Gen(stamp=True, wopf=False); s = g.build(); open("fused_st_nopf.s", "w").write(s); open("fused_st_nopf.names", "w").write(",".join(g.stnames))
    g = Gen(stamp=True, sleep=32); s = g.build(); open("fused_st_sl32.s", "w").write(s); open("fused_st_sl32.names", "w").write(",".join(g.stnames))
    g = Gen(stamp="dbg"); s = g.build(); open("v_dbg.s", "w").write(s)
    if len(sys.argv) > 1 and sys.argv[1] == "install":
        open(f"cdna_kernels/{NAME}.s", "w").write(open("fused.s").read())
```
